```python
import torch

def _softmax(x, axis=-1):
    return torch.softmax(x, dim=axis)

def _gelu(x):
    return torch.nn.functional.gelu(x, approximate='tanh')

def _silu(x):
    return torch.nn.functional.silu(x)

def _sigmoid(x):
    return torch.sigmoid(x)

def _layernorm(x, axis=-1, eps=1e-05):
    m = x.mean(dim=axis, keepdim=True)
    v = x.var(dim=axis, keepdim=True, unbiased=False)
    return (x - m) / torch.sqrt(v + eps)

def _scatter_add(tgt, idx, src, axis=0):
    return tgt.clone().index_add_(axis, idx, src)

def _segment_sum(src, seg, n):
    out = torch.zeros((n,) + src.shape[1:], dtype=src.dtype)
    return out.index_add_(0, seg, src)

def _pad(x, pw):
    flat = tuple((v for pair in reversed(pw) for v in pair))
    return torch.nn.functional.pad(x, flat)
kernel_name = 'adaLN_cond__memory_aug_recurrent_mem_tr__mixer_channel_mlp__prompt'

def setup_inputs():

    _w = lambda a: (lambda t: t.to(torch.bfloat16) if t.is_floating_point() else t)(torch.as_tensor(a))

    def _A_setup():
        B, S, Dm = (1, 2048, 640)
        H, Dh = (32, 128)
        M, seg = (8, 32)
        seg = min(seg, S)
        S = S // seg * seg
        return {'x': _w((lambda *s: torch.randn(*s, dtype=torch.bfloat16) * 0.05)(B, S, Dm)), 'mem0': _w((lambda *s: torch.randn(*s, dtype=torch.bfloat16) * 0.4)(B, M, Dm)), 'Wq': _w((lambda *s: torch.randn(*s, dtype=torch.bfloat16) * 1.6)(Dm, H, Dh) * Dm ** (-0.5)), 'Wk': _w((lambda *s: torch.randn(*s, dtype=torch.bfloat16) * 1.6)(Dm, H, Dh) * Dm ** (-0.5)), 'Wv': _w((lambda *s: torch.randn(*s, dtype=torch.bfloat16) * 0.4)(Dm, H, Dh) * Dm ** (-0.5)), 'Wo': _w((lambda *s: torch.randn(*s, dtype=torch.bfloat16) * 0.4)(H, Dh, Dm) * (H * Dh) ** (-0.5)), 'seg_len': seg}
    _A_in = _A_setup()

    def _B_setup():
        B, S, D, F = (1, 2048, 640, 1728)
        return {'x': _w((lambda *s: torch.randn(*s, dtype=torch.bfloat16) * 0.05)(B, S, D)), 'w1': _w((lambda *s: torch.randn(*s, dtype=torch.bfloat16) * 1.6)(D, F) * D ** (-0.5)), 'b1': _w((lambda *s: torch.randn(*s, dtype=torch.bfloat16) * 0.8)(F)), 'w2': _w((lambda *s: torch.randn(*s, dtype=torch.bfloat16) * 0.1)(F, D) * F ** (-0.5)), 'b2': _w((lambda *s: torch.randn(*s, dtype=torch.bfloat16) * 0.1)(D))}
    _B_in = _B_setup()
    return {'A_x': _A_in['x'], 'A_mem0': _A_in['mem0'], 'A_Wq': _A_in['Wq'], 'A_Wk': _A_in['Wk'], 'A_Wv': _A_in['Wv'], 'A_Wo': _A_in['Wo'], 'A_seg_len': _A_in['seg_len'], 'B_x': _B_in['x'], 'B_w1': _B_in['w1'], 'B_b1': _B_in['b1'], 'B_w2': _B_in['w2'], 'B_b2': _B_in['b2'], 'c': _w((lambda *s: torch.randn(*s, dtype=torch.bfloat16) * 0.1)(1, 640) * 8.0), 'w_mod': _w((lambda *s: torch.randn(*s, dtype=torch.bfloat16) * 0.1)(640, 6 * 640) * 640 ** (-0.5) * 8.0)}

def reference(A_x, A_mem0, A_Wq, A_Wk, A_Wv, A_Wo, A_seg_len, B_x, B_w1, B_b1, B_w2, B_b2, c, w_mod):

    def _A_ref(x, mem0, Wq, Wk, Wv, Wo, seg_len):
        B, S, Dm = x.shape
        H, Dh = (Wq.shape[1], Wq.shape[2])
        M = mem0.shape[1]
        scale = Dh ** (-0.5)
        n_seg = S // seg_len
        L = M + seg_len
        idx = torch.arange(L)
        mask = (idx[:, None] < M) | (idx[:, None] >= idx[None, :])
        mem = mem0
        outs = []
        for s in range(n_seg):
            xs = x[:, s * seg_len:(s + 1) * seg_len, :].clone()
            h = torch.concatenate([mem, xs], axis=1)
            q = torch.einsum('btd,dhe->bhte', h, Wq)
            k = torch.einsum('btd,dhe->bhte', h, Wk)
            v = torch.einsum('btd,dhe->bhte', h, Wv)
            scores = torch.einsum('bhqe,bhke->bhqk', q, k) * scale
            scores = torch.where(mask[None, None], scores, -1000000000.0)
            p = _softmax(scores, axis=-1)
            o = torch.einsum('bhqk,bhke->bhqe', p, v)
            o = torch.einsum('bhte,hed->btd', o, Wo)
            mem = o[:, :M, :].clone()
            outs.append(o[:, M:, :])
        return torch.concatenate(outs, axis=1)

    def _B_ref(x, w1, b1, w2, b2):
        y = _layernorm(x, axis=-1)
        h = _gelu(torch.einsum('bsd,df->bsf', y, w1) + b1)
        return torch.einsum('bsf,fd->bsd', h, w2) + b2
    x = A_x
    mod = (_silu(c) @ w_mod).reshape(c.shape[0], 6, 1, -1)
    sa, ca, ga, sb, cb, gb = (mod[:, 0].clone(), mod[:, 1].clone(), mod[:, 2].clone(), mod[:, 3].clone(), mod[:, 4].clone(), mod[:, 5].clone())
    h = _layernorm(x, axis=-1) * (1 + ca) + sa
    x = x + ga * _A_ref(h, A_mem0, A_Wq, A_Wk, A_Wv, A_Wo, A_seg_len)
    h = _layernorm(x, axis=-1) * (1 + cb) + sb
    x = x + gb * _B_ref(h, B_w1, B_b1, B_w2, B_b2)
    return x
```

```python
class Asm:
    def __init__(self):
        self.lines = []
        self._lab = 0
    def __call__(self, s):
        for l in s.strip('\n').split('\n'):
            l = l.strip()
            if l:
                self.lines.append(('' if l.endswith(':') else '    ') + l)
        return self
    def c(self, s):
        self.lines.append('    ; ' + s)
    def label(self, base='L'):
        self._lab += 1
        return f'{base}_{self._lab}'
    def text(self):
        return '\n'.join(self.lines) + '\n'

def v(i, n=1):
    return f'v{i}' if n == 1 else f'v[{i}:{i+n-1}]'
def a(i, n=1):
    return f'a{i}' if n == 1 else f'a[{i}:{i+n-1}]'
def s(i, n=1):
    return f's{i}' if n == 1 else f's[{i}:{i+n-1}]'
def r(i, n=1):
    if i < 256:
        assert i + n <= 256
        return v(i, n)
    return a(i - 256, n)

def kernel_file(name, body, launch, vgpr=512, accum=256, sgpr=102, kernarg=136, header=''):
    return f"""{header}{launch}
.amdgcn_target "amdgcn-amd-amdhsa--gfx950"
.text
.globl {name}
.p2align 8
.type {name},@function
{name}:
{body}
.section .rodata,"a"
.p2align 6
.amdhsa_kernel {name}
  .amdhsa_next_free_vgpr {vgpr}
  .amdhsa_next_free_sgpr {sgpr}
  .amdhsa_accum_offset {accum}
  .amdhsa_group_segment_fixed_size 0
  .amdhsa_kernarg_size {kernarg}
  .amdhsa_user_sgpr_count 2
  .amdhsa_user_sgpr_kernarg_segment_ptr 1
  .amdhsa_system_sgpr_workgroup_id_x 1
.end_amdhsa_kernel
"""
```

```python
from common import *
P16, PL, IDX, PX, PT, PR, PP, PM, P4, Q0, Q1, Q2 = range(12)
FLG = PM
RB, X, VA, Y, M, K, V, KN, ZA, ZB = 12, 16, 32, 40, 48, 56, 64, 72, 80, 88
RES0 = 96
VN = ZA
L_QK, L_PX, L_PM, L_W = 10240, 14336, 15360, 16384
L_O, L_MX = L_QK, 0
NLS = (20, 20, 16, 16)
MEMW, PUBW, FLGW = 3, 1, 1
RED = {2: 0, 0: 1}
WD = 8
sHEAD = sMEM
sSTEP = 14
sPst, sUpoll, sPar, sMin, sMout, sRin, sKN, sKM, sRout, sT0, sT1, sFLG, sQS, sLo, sRng, sNST, sVV, sMbase, sRbase, sNEAR = range(16, 36)
sHALF = 36
sFKM = 100
sKVL, sKML = 98, 99
sMK = 38
sC = 96
sST = 48
def lbase(w): return L_W + sum(NLS[:w]) * 2048
def SMF(acc, A, B, wo=False):
    return f'v_smfmac_f32_16x16x64_bf16 {v(acc,4)}, {v(A,4)}, {r(B,8)}, {v(IDX)}' + (' abid:1' if wo else '')
def zero(S, reg, n):
    for i in range(0, n, 2): S(f'v_mov_b64 {v(reg + i, 2)}, 0')
mov2 = lambda d, a_: f'v_mov_b64 {v(d,2)}, {v(a_,2)}'
z2 = lambda x: f'v_mov_b64 {v(x,2)}, 0'

class Plan:
    def __init__(self, w, early=False):
        self.w = w
        self.tiles = [w, 4 + w] + ([8 + w] if w < 2 else [])
        lo = [w, w ^ 1, w ^ 2, w ^ 3, 4]
        self.co = lo + [5 + c for c in lo]
        six = (('q', 0), ('q', 1), ('k', 0), ('k', 1), ('v', 0), ('v', 1))
        co = self.co
        self.p1 = [(m, c, t) for c in co[:6] for m, t in six] + [(m, c, t) for c in co[6:8] for m, t in six[:4]]
        self.p1 += [(m, c, t) for m in 'qk' for c in co[8:] for t in range(2)]
        self.vv = [('v', c, t) for c in (co[6], co[7], co[8], co[9]) for t in range(2)]
        nt = len(self.tiles)
        self.wo = [('o', T, w) for T in self.tiles] + [('o', T, w ^ j) for T in self.tiles for j in (1, 2, 3)]
        q = {i: (sl, None) for i, sl in enumerate([Y, ZA, ZB, KN])}
        q.update({8: (ZA, (2, 3)), 10: (ZB, (4, 5)), 12: (KN, (6, 7)), 14: (ZA, (8, 9)), 16: (ZB, (10, 11)), 19: (KN, (13, 14)), 21: (ZA, (15, 16)), 24: (M, (18, 19))})
        if w < 2: q.update({26: (ZB, (20, 21)), 28: (KN, (22, 23)), 37: (ZB, (28, 29)), 41: (M, (33, 34))})
        if early:
            q = {i: (sl, None) for i, sl in enumerate([Y, ZB, KN, ZA])}
            if w < 2: q.update({9: (ZB, (3, 4)), 15: (ZB, (9, 10)), 21: (ZB, (15, 16)), 27: (ZB, (21, 22)), 33: (ZB, (27, 28)), 38: (ZB, (33, 34)),
                                13: (M, (7, 8)), 19: (M, (13, 14)), 25: (M, (19, 20)), 35: (M, (29, 31)), 41: (M, (35, 36)), 46: (M, (41, 42))})
            else: q.update({9: (ZB, (3, 4)), 16: (ZB, (9, 10)), 23: (ZB, (16, 18)), 37: (ZB, (29, 31)),
                            19: (M, (13, 14)), 26: (M, (19, 20)), 34: (M, (27, 28)), 42: (M, (34, 35))})
        self.p1_nr = q
        self.vv_nr = {0: (M, (46, 47) if early else (45, 46))}
        self.wo_nr = {0: (K, None), 1: (ZB, None), nt + 1: (V, None)}
        self.loc = {}
        nr = nl = 0
        for lst, tab in ((self.p1, self.p1_nr), (self.vv, self.vv_nr), (self.wo, self.wo_nr)):
            for i, b in enumerate(lst):
                if i in tab: self.loc[b] = ('L', nl); nl += 1
                else: self.loc[b] = ('R', RES0 + 8*nr); nr += 1
        assert nl == NLS[w] and RES0 + 8*nr == 512, (w, nl, nr)
    def fetch(self, b, slot):
        return [f'ds_read_b128 {v(slot + 4*h, 4)}, {v(PL)} offset:{self.loc[b][1]*2048 + h*1024}' for h in range(2)]
    def reg(self, lst, tab, i): return tab[i][0] if i in tab else self.loc[lst[i]][1]

class Chain:
    def __init__(self, w, sc1=False, stamps='', pfx='c', ko=''):
        self.w, self.ko, self.stamps = w, ko, stamps
        self.sc = ' sc1' if sc1 else ''
        self.p = f'L{pfx}{w}'; self.nst = 0
        self.plan = Plan(w, 'a' in ko)
        if stamps:
            for b, l in list(self.plan.loc.items()):
                if l == ('R', 248): self.plan.loc[b] = ('R', 240)
        self.kvpol = ('nt', 'sc1', '', 'sc0 sc1', 'sc1 nt')[self.opt('n', 0)]
    def opt(self, c, default):
        return int(self.ko[self.ko.index(c) + 1], 36) if c in self.ko else default
    def stamp(self, S):
        if self.stamps == 'L':
            S.raw(f'    s_memtime {s(sST + 2*self.nst, 2)}'); self.nst += 1
            assert self.nst <= 8
    def budget(self, T, again, done=None):
        spin_tail(T, again)
        if done: T(f's_branch {done}')

    def setup(self, S):
        w = self.w
        S(f'''
        s_mov_b32 {s(sQS)}, {QSCALE}
        s_mov_b32 {s(sLo)}, {(127-60) << 23}
        s_mov_b32 {s(sRng)}, {120 << 23}
        s_lshl_b32 {s(sT1)}, {s(sTEAM)}, 19
        s_add_u32 {s(sT1)}, {s(sT1)}, {C2_P}
        s_lshl_b32 {s(sT0)}, {s(sHEAD)}, 7
        s_add_u32 {s(sFLG)}, {s(sT0)}, {FL_KV}
        s_add_u32 {s(sPst)}, {s(sT0)}, {s(sT1)}
        s_add_u32 {s(sPst)}, {s(sPst)}, {w*16384}
        s_lshl_b32 {s(sUpoll)}, {s(sHEAD)}, 12
        s_add_u32 {s(sUpoll)}, {s(sUpoll)}, {s(sT1)}
        s_add_u32 {s(sUpoll)}, {s(sUpoll)}, {RED.get(w, 0)*131072}
        s_lshl_b32 {s(sT1)}, {s(sTEAM)}, 17
        s_add_u32 {s(sT0)}, {s(sT0)}, {RED.get(w, 0)*4096}
        s_add_u32 {s(sMin)}, {s(sT1)}, {C2_M + 1024}
        s_add_u32 {s(sMbase)}, {s(sT1)}, {s(sT0)}
        s_add_u32 {s(sRbase)}, {s(sMbase)}, {s(sNEAR)}
        s_add_u32 {s(sRbase)}, {s(sRbase)}, {C2_X}
        s_add_u32 {s(sMbase)}, {s(sMbase)}, {C2_M}
        s_mov_b32 {s(sMout)}, {s(sMbase)}
        s_mov_b32 {s(sRout)}, {s(sRbase)}
        s_xor_b32 {s(sRin)}, {s(sT1)}, 0x20000
        s_add_u32 {s(sRin)}, {s(sRin)}, {s(sNEAR)}
        s_add_u32 {s(sRin)}, {s(sRin)}, {C2_X + 1024}
        s_xor_b32 {s(sT1)}, {s(sNEAR)}, 0x2000
        s_lshl_b32 {s(sKVL)}, {s(sHEAD)}, 15
        s_add_u32 {s(sKVL)}, {s(sKVL)}, {s(sT1)}
        s_add_u32 {s(sKVL)}, {s(sKVL)}, {OFF_KV + w*2048}
        s_lshr_b32 {s(sKML)}, {s(sHEAD)}, 1
        s_lshl_b32 {s(sKML)}, {s(sKML)}, 14
        s_and_b32 {s(sT0)}, {s(sHEAD)}, 1
        s_lshl_b32 {s(sT0)}, {s(sT0)}, 12
        s_add_u32 {s(sKML)}, {s(sKML)}, {s(sT0)}
        s_add_u32 {s(sKML)}, {s(sKML)}, {s(sT1)}
        s_add_u32 {s(sKML)}, {s(sKML)}, {OFF_KM}
        {swz(sKM, sKML)}
        {self.nextKV(0)}
        s_lshl_b32 {s(sFKM)}, {s(sTEAM)}, 5
        s_add_u32 {s(sFKM)}, {s(sFKM)}, {s(sHEAD)}
        s_lshl_b32 {s(sFKM)}, {s(sFKM)}, 6
        s_add_u32 {s(sFKM)}, {s(sFKM)}, {FL_KM}
        s_sub_u32 {s(sNST)}, {s(sNST)}, 1
        s_sub_u32 {s(sHALF)}, {s(sTEAM)}, 1
        s_not_b32 {s(sHALF+1)}, {s(sHALF)}
        s_mov_b32 {s(sPar)}, 1
        s_mov_b32 {s(sSTEP)}, 0
        ''')
        if w == 0: S(f's_sub_u32 {s(sMin)}, {s(sMin)}, 1024\ns_sub_u32 {s(sRin)}, {s(sRin)}, 1024')
        for d, m in enumerate((0x0011, 0x1100, 0x0022, 0x2200, 0xF0F0)):
            mm = m | (m << 16)
            S(f's_mov_b32 {s(sMK+2*d)}, {mm}\ns_mov_b32 {s(sMK+2*d+1)}, {mm}')
    def load_weights(self, S):
        w, plan = self.w, self.plan
        A_L, SRC, SRCO, SRC2, WQ, WO, W2, TQ, TO, T2 = 1, 2, 3, 4, 5, 9, 10, 11, 13, 14
        t0, t1, t2, t3, t4 = 16, 17, 18, 19, 20
        S(f'''
        v_lshrrev_b32 {v(t0)}, 4, v0
        v_and_b32 {v(t1)}, 15, v0
        v_lshlrev_b32 {v(t2)}, 13, {v(t0)}
        v_lshl_add_u32 {v(SRC)}, {v(t1)}, 4, {v(t2)}
        v_mul_u32_u24 {v(t2)}, 1280, {v(t0)}
        v_lshl_add_u32 {v(SRCO)}, {v(t1)}, 4, {v(t2)}
        v_lshrrev_b32 {v(t2)}, 3, v0
        v_mul_u32_u24 {v(t2)}, 1280, {v(t2)}
        v_and_b32 {v(t3)}, 7, v0
        v_lshl_add_u32 {v(SRC2)}, {v(t3)}, 4, {v(t2)}
        v_lshlrev_b32 {v(W2)}, 4, v0
        v_add_u32 {v(A_L)}, {lbase(w)}, {v(W2)}
        v_and_b32 {v(t2)}, 1, {v(t0)}
        v_lshlrev_b32 {v(t3)}, 5, {v(t2)}
        v_xor_b32 {v(WQ)}, {v(W2)}, {v(t3)}
        v_xor_b32 {v(WQ+1)}, 64, {v(WQ)}
        v_xor_b32 {v(WQ+2)}, 0x80, {v(WQ)}
        v_xor_b32 {v(WQ+3)}, 0xc0, {v(WQ)}
        v_lshlrev_b32 {v(t3)}, 6, {v(t2)}
        v_xor_b32 {v(WO)}, {v(W2)}, {v(t3)}
        v_xor_b32 {v(WO)}, {(w & 1)*128}, {v(WO)}
        v_lshrrev_b32 {v(t0)}, 5, v0
        v_bfe_u32 {v(t1)}, v0, 4, 1
        v_bfe_u32 {v(t2)}, v0, 3, 1
        v_bfe_u32 {v(t3)}, v0, 2, 1
        v_and_b32 {v(t4)}, 3, v0
        v_lshlrev_b32 {v(t4)}, 3, {v(t4)}
        v_lshl_add_u32 {v(TQ)}, {v(t0)}, 12, {v(t4)}
        v_lshl_add_u32 {v(TQ)}, {v(t1)}, 10, {v(TQ)}
        v_lshl_add_u32 {v(TQ)}, {v(t2)}, 11, {v(TQ)}
        v_lshl_add_u32 {v(TQ)}, {v(t3)}, 8, {v(TQ)}
        v_lshl_add_u32 {v(TQ)}, {v(t3)}, 5, {v(TQ)}
        v_lshl_add_u32 {v(TQ)}, {v(t1)}, 6, {v(TQ)}
        v_lshl_add_u32 {v(TQ)}, {v(t2)}, 7, {v(TQ)}
        v_xor_b32 {v(TQ)}, {64*w}, {v(TQ)}
        v_xor_b32 {v(TQ+1)}, 32, {v(TQ)}
        v_lshl_add_u32 {v(t4)}, {v(t2)}, 5, {v(t4)}
        v_lshlrev_b32 {v(t2)}, 4, {v(t1)}
        v_lshl_add_u32 {v(t2)}, {v(t0)}, 2, {v(t2)}
        v_add_u32 {v(t2)}, {v(t2)}, {v(t3)}
        v_lshl_add_u32 {v(T2)}, {v(t2)}, 7, {v(t4)}
        v_lshl_add_u32 {v(TO)}, {v(t2)}, 8, {v(t4)}
        v_lshl_add_u32 {v(TO)}, {v(t3)}, 6, {v(TO)}
        v_lshl_add_u32 {v(TO)}, {v(t1)}, 7, {v(TO)}
        v_xor_b32 {v(TO)}, {64*w}, {v(TO)}
        ''')
        srd = {'q': 52, 'k': 56, 'v': 60, 'o': 64}
        for m, nm in (('q', 'Wq'), ('k', 'Wk'), ('v', 'Wv'), ('o', 'Wo')):
            S(f's_load_dwordx2 {s(srd[m], 2)}, s[0:1], {ARG[nm]}')
        S('s_waitcnt lgkmcnt(0)')
        for m in 'qkvo': S(f's_mov_b32 {s(srd[m]+2)}, {640*4096*2}\ns_mov_b32 {s(srd[m]+3)}, 0x20000')
        sB, sBr, sBo, sT = 68, 69, 70, 71
        S(f'''
        s_lshl_b32 {s(sT)}, {s(sHEAD)}, 8
        s_mul_i32 {s(sB)}, {s(sTEAM)}, {320*8192}
        s_sub_u32 {s(sBr)}, {320*8192}, {s(sB)}
        s_add_u32 {s(sB)}, {s(sB)}, {s(sT)}
        s_add_u32 {s(sBr)}, {s(sBr)}, {s(sT)}
        s_mul_i32 {s(sBo)}, {s(sHEAD)}, {128*1280}
        s_mul_i32 {s(sT)}, {s(sTEAM)}, 640
        s_add_u32 {s(sBo)}, {s(sBo)}, {s(sT)}
        ''')
        qkv = [(m, c) for c in (0, 5, 1, 6, 2, 7, 3, 8, 4, 9) for m in 'qkv'] if 'o' in self.ko else [(m, c) for c in range(10) for m in 'qkv']
        pieces = [('o', T, hf) for T in range(2) for hf in range(2)] + [('o', 2)] + qkv
        def blocks(p):
            if p[0] != 'o': return [(p[0], p[1], t) for t in range(2)]
            if p[1] < 2: return [('o', 4*p[1] + w, 2*p[2] + t) for t in range(2)]
            return [('o', 8 + w, j) for j in range(4)] if w < 2 else []
        free = list(range(16, 96, 8)); home = {}
        def need(p):
            bl = blocks(p); return sum(plan.loc[b][0] == 'L' for b in bl) + max(0, 2 - len(bl))
        def issue(p):
            h = [plan.loc[b][1] if plan.loc[b][0] == 'R' else free.pop(0) for b in blocks(p)]
            while len(h) < 2: h.append(free.pop(0))
            home[p] = h
            for i in range(4):
                if len(p) == 3: off, base, ad = (64*p[2] + 16*w + 4*i)*1280 + p[1]*256, sBo, SRCO
                elif p[0] == 'o': off, base, ad = (32*w + 8*i)*1280 + 512, sBo, SRC2
                else: off, base, ad = (64*(p[1] % 5) + 16*w + 4*i)*8192, sB if p[1] < 5 else sBr, SRC
                S(f's_add_u32 {s(sT)}, {s(base)}, {off}')
                S(f'buffer_load_dwordx4 {r(h[i >> 1] + 4*(i & 1), 4)}, {v(ad)}, {s(srd[p[0]], 4)}, {s(sT)} offen')
        DEPTH = self.opt('Q', 6)
        nxt = [0]
        def fill(k):
            while nxt[0] < len(pieces) and nxt[0] < k + DEPTH and need(pieces[nxt[0]]) <= len(free):
                issue(pieces[nxt[0]]); nxt[0] += 1
        fill(0)
        for k, p in enumerate(pieces):
            h = home[p]
            for i in range(4):
                ad = WO if len(p) == 3 else W2 if p[0] == 'o' else WQ + i
                S(f'ds_write_b128 {v(ad)}, {r(h[i >> 1] + 4*(i & 1), 4)} offset:{w*4096 + i*1024}')
            S.wait(lg=0); S('s_barrier')
            for t, b in enumerate(blocks(p)):
                for D in range(4):
                    if len(p) == 3: ad, off = TO, (32*t + 8*(D >> 1) + 2*(D & 1)) * 256
                    elif p[0] == 'o': ad, off = T2, (32*t + 8*(D >> 1) + 2*(D & 1)) * 128 + 64*w
                    else: ad, off = TQ + t, (32*(D >> 1) + 2*(D & 1)) * 256
                    S(f'ds_read_b64_tr_b16 {r(h[t] + 2*D, 2)}, {v(ad)} offset:{off}')
            S.wait(lg=0); S('s_barrier')
            for t, b in enumerate(blocks(p)):
                kind, i = plan.loc[b]
                if kind == 'L':
                    for hh in range(2): S(f'ds_write_b128 {v(A_L)}, {v(h[t] + 4*hh, 4)} offset:{i*2048 + hh*1024}')
            free.extend(x for x in h if x < RES0)
            fill(k + 1)
        S.wait(vm=0, lg=0)
    def lane_consts(self, S):
        w = self.w
        S(f'''
        v_and_b32 v16, 15, v0
        v_lshrrev_b32 v17, 4, v0
        v_and_b32 v18, 1, v16
        v_lshrrev_b32 v19, 3, v16
        v_mov_b32 v20, 0xaaaa
        v_mul_u32_u24 v18, v18, v20
        v_mul_u32_u24 v19, v19, v20
        v_lshl_add_u32 v18, v19, 16, v18
        v_add_u32 {v(IDX)}, 0x44444444, v18
        v_lshrrev_b32 v18, 1, v17
        v_lshlrev_b32 v18, 6, v18
        v_lshlrev_b32 v19, 3, v16
        v_xor_b32 v18, v18, v19
        v_lshl_add_u32 {v(PX)}, v17, 7, v18
        v_and_b32 v18, 3, v0
        v_lshrrev_b32 v19, 2, v0
        v_lshlrev_b32 v19, 3, v19
        v_lshrrev_b32 v20, 1, v18
        v_lshlrev_b32 v20, 6, v20
        v_xor_b32 v19, v19, v20
        v_lshl_add_u32 {v(PT)}, v18, 7, v19
        v_and_b32 v18, 7, v16
        v_lshrrev_b32 v19, 1, v18
        v_and_b32 v20, 1, v18
        v_lshl_add_u32 v19, v19, 2, v20
        v_lshl_add_u32 v19, v17, 4, v19
        v_lshlrev_b32 {v(PR)}, 4, v19
        v_lshlrev_b32 v19, 12, v17
        v_lshl_add_u32 {v(PP)}, v16, 3, v19
        v_lshlrev_b32 v19, 5, v17
        v_lshl_add_u32 {v(PM)}, v18, 2, v19
        v_lshlrev_b32 {v(P4)}, 2, v0
        v_lshlrev_b32 {v(P16)}, 4, v0
        v_add_u32 {v(PL)}, {lbase(w)}, {v(P16)}
        ''')
        if w == 0: S(f'v_add_u32 {v(P4)}, 1024, {v(P4)}')
        if w not in RED: S(f'v_mov_b32 {v(FLG)}, 0')
    def init_rings(self, S):
        w, sc = self.w, self.sc
        zero(S, M, 4)
        if w == 0: S(f'ds_write_b128 {v(P16)}, {v(M,4)} offset:{L_PM}')
        if w not in RED: return
        make_srd(S, WD, 'mem0', 10240)
        S(f'''
        s_add_u32 {s(sT0)}, {s(sHEAD)}, {32*RED[w]}
        s_min_u32 {s(sT0)}, {s(sT0)}, 39
        s_and_b32 {s(sT1)}, {s(sT0)}, 1
        s_mul_i32 {s(sT1)}, {s(sT1)}, 5120
        s_lshr_b32 {s(sT0)}, {s(sT0)}, 1
        s_lshl_b32 {s(sT0)}, {s(sT0)}, 5
        s_add_u32 {s(sT0)}, {s(sT0)}, {s(sT1)}
        s_mul_i32 {s(sT1)}, {s(sTEAM)}, 640
        s_add_u32 {s(sT0)}, {s(sT0)}, {s(sT1)}
        v_lshrrev_b32 {v(X)}, 5, {v(PM)}
        v_mul_u32_u24 {v(X)}, 1280, {v(X)}
        v_and_b32 {v(X+1)}, 31, {v(PM)}
        v_add_u32 {v(X)}, {v(X)}, {v(X+1)}
        buffer_load_dword {v(X+2)}, {v(X)}, {s(WD,4)}, {s(sT0)} offen
        v_mov_b32 {v(M+4)}, -1
        ''')
        for i in range(4): S(f'buffer_store_dwordx4 {v(M,4)}, {v(P16)}, {SRD}, {s(sUpoll)} offen offset:{i*1024}{sc}')
        for base, pol in ((sMbase, sc), (sRbase, ' sc1')):
            for slot in range(1, 4):
                S(f's_add_u32 {s(sT0)}, {s(base)}, {slot*MB}')
                S(f'buffer_store_dword {v(M+4)}, {v(PM)}, {SRD}, {s(sT0)} offen{pol}')
            S(f'buffer_store_dword {v(X+2)}, {v(PM)}, {SRD}, {s(base)} offen{pol}')
    def nextKV(self, n=1):
        if 'k' in self.ko: n = 0
        return f's_add_u32 {s(sKVL)}, {s(sKVL)}, {n*32*KVB}\n{swz(sKN, sKVL)}\ns_add_u32 {s(sVV)}, {s(sKN)}, 16384'
    def ldK(self):
        return [f'buffer_load_dwordx4 {v(KN + 4*j,4)}, {v(P16)}, {SRD}, {s(sKN)} offen offset:{j*1024} {self.kvpol}' for j in range(2)] + \
               [f'buffer_load_dwordx4 {v(VN + 4*t,4)}, {v(P16)}, {SRD}, {s(sVV)} offen offset:{t*1024} {self.kvpol}' for t in range(2)]
    def idle(self, S):
        P = self.plan
        for i in range(4): S(mov2(K + 2*i, KN + 2*i))
        for i in range(4): S(mov2(V + 2*i, VN + 2*i))
        for i, (sl, gap) in P.p1_nr.items():
            if gap is None:
                for x in P.fetch(P.p1[i], sl): S(x)
        zero(S, VA, 8)
    def enter(self, S):
        for x in self.ldK(): S(x)
        S(self.nextKV())
        if 'I' not in self.ko: self.idle(S)

    def body(self, S, O):
        w, p, sc, ko, P = self.w, self.p, self.sc, self.ko, self.plan
        self.nst = 0
        co = P.co
        hd = 'd' * ('h' in ko)
        def br(lab_):
            def f(T): T(f's_cbranch_vccnz {p}_{lab_}{hd}'); T.label(f'{p}_{lab_}d')
            return f
        def bar(tag):
            def f(T): T.wait(tag=tag); T('s_barrier')
            return f
        acc = {('q', 0): X, ('q', 1): X + 4, ('k', 0): X + 8, ('k', 1): X + 12, ('v', 0): VA, ('v', 1): VA + 4}
        rdA = lambda c, buf: f'ds_read_b128 {v(buf,4)}, {v(P16)} offset:{c*1024}'
        o4, oq = max(w - 1, 0)*1024, 3072 + w*256
        lq = 4096 + w*256 - (1024 if w == 0 else 0)
        def ldM(so, b, q): return [f'buffer_load_dwordx4 {v(b,4)}, {v(P16)}, {SRD}, {s(so)} offen offset:{o4} sc1', f'buffer_load_dword {v(q)}, {v(P4)}, {SRD}, {s(so)} offen offset:{oq} sc1']
        def wrM(h, b, q): return [(f'ds_write_b128 {v(P16)}, {v(b,4)} offset:{(5*h + w)*1024}', 'mw'), (f'ds_write_b32 {v(P4)}, {v(q)} offset:{5120*h + lq}', 'mw')]
        def ckM(b, q): return [f'v_max3_u32 {v(q)}, {v(q)}, {v(b)}, {v(b+1)}', f'v_max3_u32 {v(q)}, {v(q)}, {v(b+2)}, {v(b+3)}', f'v_cmp_eq_u32 vcc, -1, {v(q)}']
        fill = {i: [] for i in range(52)}
        for lst, tab in ((P.p1, P.p1_nr), (P.vv, P.vv_nr)):
            for i, (slot, gap) in tab.items():
                if gap is not None:
                    f = P.fetch(lst[i], slot); fill[gap[0]].append(f[0]); fill[gap[1]].append(f[1])
        S.label(f'{p}_top')
        fl = w == FLGW and 'F' in ko
        ldF = [f'v_and_b32 {v(Q0)}, 0x30, {v(P16)}', f'buffer_load_dword {v(FLG)}, {v(Q0)}, {SRD}, {s(sFLG)} offen sc1']
        ldR = ldM(sRin, RB, Q2)
        RD = self.opt('D', 0)
        HB = self.opt('H', 2)
        def head(T, b):
            self.stamp(T)
            pend = [rdA(co[1], Y), rdA(co[2], Y + 4)] + fill[2] + fill[3] + fill[4] + fill[5]
            for i in range(6):
                m, c, t = P.p1[i]
                T(SMF(acc[m, t], b, P.reg(P.p1, P.p1_nr, i)))
                if i in (RD, RD + 1): T(ldR[i - RD], tag='junk')
                if i == HB: T.force_wait(lg=0); T('s_barrier')
                if i >= HB:
                    n = 1 if i == HB else -(-len(pend) // (6 - i))
                    for _ in range(n): T(pend.pop(0))
        sets = ((M, Q0), (M + 4, Q1))
        def chk(b, q):
            wr = wrM(0, b, q)
            S(f'v_max3_u32 {v(Q2)}, {v(b)}, {v(b+1)}, {v(b+2)}\nv_max3_u32 {v(Q2)}, {v(Q2)}, {v(b+3)}, {v(q)}\nv_cmp_eq_u32 vcc, -1, {v(Q2)}')
            S(*wr[0]); S(*wr[1])
        for x in ldM(sMin, *sets[0]): S(x)
        if 'I' in ko:
            T = Stream(); self.idle(T); zero(T, X, 16)
            work = [o.text for o in T.out]; n1 = self.opt('I', 12)
            for x in work[:n1]: S(x)
            for x in ldM(sMin, *sets[1]): S(x)
            for x in work[n1:]: S(x)
            S.force_wait(lg=0)
            if 'e' in ko:
                for x in ldM(sRin, RB, RB): S(x, tag='junk')
                chk(*sets[0]); S(f's_cbranch_vccz {p}_pa0')
                for x in ldM(sMin, *sets[0]): S(x)
                chk(*sets[1]); S(f's_cbranch_vccz {p}_pa1')
                for x in ldM(sMin, *sets[1]): S(x)
            ob = Stream(); ob.label(f'{p}_pa'); ob.gap([ldM(sMin, *sets[1])]); ob(f's_branch {p}_pb'); O.append(ob.text())
            S.label(f'{p}_pb')
        else:
            zero(S, X, 16); S.force_wait(lg=0)
            S.label(f'{p}_pa')
            for x in ldM(sMin, *sets[1]): S(x)
        chk(*sets[0])
        S(f's_cbranch_vccz {p}_pa0')
        if hd: S(f's_branch {p}_pa0')
        st0 = S.state()
        for x in ldM(sMin, *sets[0]): S(x)
        chk(*sets[1])
        S(f's_cbranch_vccz {p}_pa1')
        if self.stamps: S('s_add_u32 s90, s90, 1')
        self.budget(S, f'{p}_pa')
        S.label(f'{p}_pa1')
        O0 = Stream(st0); O0.label(f'{p}_pa0'); head(O0, M); O0(f's_branch {p}_pad'); O.append(O0.text())
        self.nst = 0
        head(S, M + 4)
        S.label(f'{p}_pad')
        allr = {('v', i) for i in list(range(M, M + 8)) + [Q0, Q1]}
        S.vm = [(allr if e[0] & allr else e[0], e[1]) for e in S.vm]
        abuf = {co[1]: Y, co[2]: Y + 4, co[3]: Y, co[4]: Y + 4, co[5]: RB, co[6]: Y, co[7]: Y + 4, co[8]: ZB, co[9]: ZB + 4}
        GR = self.opt('G', 24)
        for k, g in ((3, 12), (4, 17), (6, GR + 6), (7, GR + 8), (8, 38), (9, 39)): fill[g].insert(0, rdA(co[k], abuf[co[k]]))
        wr = wrM(1, RB, Q2); ck = ckM(RB, Q2)
        fill[GR] += [wr[0]]; fill[GR + 1] += [wr[1], ck[0]]; fill[GR + 2] += [ck[1]]; fill[GR + 3] += [ck[2]]
        fill[GR + 5].append(br('rr')); fill[GR + 6].insert(0, bar('mw'))
        if self.stamps: fill[GR + 6].insert(1, self.stamp)
        ob = Stream(); ob.label(f'{p}_rr')
        if self.stamps: ob('s_add_u32 s91, s91, 1')
        ob.gap([ldR]); ob.gap([wr]); ob.gap([ck]); ob.force_wait(lg=0); ob(f's_cbranch_vccz {p}_rrd'); self.budget(ob, f'{p}_rr', f'{p}_rrd'); O.append(ob.text())
        for x, g in zip(self.ldK(), [self.opt('a', 6) + w + 4*j for j in range(4)] if 'a' in ko else (GR + 7, 35, 40 + 3*(w & 1), 44 + 3*(w & 1))): fill[g].append(x)
        if fl: fill[44].append(ldF[0]); fill[48].append(ldF[1])
        ring = lambda x: f's_add_u32 {s(x)}, {s(x)}, {MB}\ns_bitset0_b32 {s(x)}, 16'
        fill[36].append(ring(sMin)); fill[32].append(ring(sMout)); fill[35].append(ring(sRin)); fill[44 - 6*(w & 1)].append(ring(sRout))
        if w in RED:
            fill[33] += [f'v_mov_b32 {v(Q1)}, -1']; fill[47] += [f's_xor_b32 {s(sT0)}, {s(sRout)}, {2*MB}']; fill[34] += [f's_xor_b32 {s(sT1)}, {s(sMout)}, {2*MB}']
            fill[36] += [f'buffer_store_dword {v(Q1)}, {v(PM)}, {SRD}, {s(sT1)} offen{sc}']
            fill[48] += [f'buffer_store_dword {v(Q1)}, {v(PM)}, {SRD}, {s(sT0)} offen sc1']
        stF = f'buffer_store_dword {v(Q1)}, off, {SRD}, {s(sFKM)} sc1'
        if w == 3: fill[33].append(f'v_mov_b32 {v(Q1)}, {s(sSTEP)}'); fill[41].append(stF)
        post = lambda a_, d: [f'v_add_f32 {v(a_)}, {v(a_)}, {v(a_+1)}', f'v_add_f32 {v(a_+2)}, {v(a_+2)}, {v(a_+3)}', f'v_cvt_pk_bf16_f32 {v(d)}, {v(a_)}, {v(a_+2)}']
        q0 = post(X, X)
        for i in range(3): fill[48 + i].append(q0[i])
        for i in range(6, 52):
            m, c, t = P.p1[i]
            S(SMF(acc[m, t], abuf[c], P.reg(P.p1, P.p1_nr, i)))
            S.gap(fill[i])
        self.stamp(S)
        for x in post(X + 4, X + 1) + post(X + 8, X + 8) + post(X + 12, X + 9): S(x)
        S(f'ds_write2st64_b64 {v(PX)}, {v(X, 2)}, {v(X + 8, 2)} offset0:{L_QK//512 + w} offset1:{L_QK//512 + 4 + w}', tag='qk')
        vi = [0]
        def Vp(n, mem=(), alu=()):
            mem = list(mem); alu = list(alu)
            for _ in range(n):
                i = vi[0]; vi[0] += 1; m, c, t = P.vv[i]
                S(SMF(acc[m, t], abuf[c], P.reg(P.vv, P.vv_nr, i)))
                S.gap([mem.pop(0) if mem else None, alu.pop(0) if alu else None])
            S.gap(mem + alu)
        nt = len(P.tiles)
        pw = {sl: P.fetch(P.wo[i], sl) for i, (sl, g) in P.wo_nr.items()}
        ONES = RB
        ones = [f'v_mov_b32 {v(ONES+i)}, 0x3f803f80' for i in range(4)]
        Vp(4, [], ones)
        S.wait(tag='qk'); S('s_barrier')
        mw, kw = w == MEMW, w == PUBW
        tr = [f'ds_read_b64_tr_b16 {v(X + 8*m + 2*j, 2)}, {v(PT)} offset:{L_QK + 2048*m + j*512}' for m in range(2) for j in range(4)]
        dppadd = lambda d, a_, b: f'v_add_f32_dpp {v(d)}, {v(a_)}, {v(b)} quad_perm:[2,3,0,1] row_mask:0xf bank_mask:0xf'
        VP, VQ = Q1, M + 4
        vpost = post(VA, VP) + post(VA + 4, VP + 1) + [f'v_mov_b32 {v(VQ)}, {v(VP+1)}', f'v_mov_b32 {v(VQ+1)}, {v(VP)}']
        pubv = None if 'p' in ko else [f's_mov_b64 exec, {s(sHALF,2)}', f'buffer_store_dwordx2 {v(VP,2)}, {v(PX)}, {SRD}, {s(sKM)} offen offset:{2048 + w*512} sc1', 's_mov_b64 exec, -1']
        def expP(T):
            for i in range(4 if mw else 2): T(f'v_exp_f32 {v(X+i)}, {v(M+i)}')
            T(f'v_cvt_pk_bf16_f32 {v(X)}, {v(X)}, {v(X+1)}')
            if mw:
                T(f'v_cvt_pk_bf16_f32 {v(X+2)}, {v(X+2)}, {v(X+3)}')
                T(f'ds_write2st64_b32 {v(Q0)}, {v(X)}, {v(X+2)} offset0:{L_PX//256} offset1:{L_PM//256}', tag='pw')
            else: T(f'ds_write_b32 {v(P16)}, {v(X)} offset:{L_PX + 4*w}', tag='pw')
        if mw:
            for j in (0, 1, 4, 5, 2, 3, 6, 7): S(tr[j])
            S(f'v_add_u32 {v(Q0)}, {4*w}, {v(P16)}')
            S(MF32(M + 4, X + 8, X)); S(MF32(M, K, X)); S(MF32(M + 4, X + 12, X + 4, M + 4)); S(MF32(M, K + 4, X + 4, M))
            S(dppadd(M + 4, M + 6, M + 4)); S(dppadd(M + 5, M + 7, M + 5))
            S(f'v_mul_f32 {v(M+4)}, {s(sQS)}, {v(M+4)}\nv_mul_f32 {v(M+5)}, {s(sQS)}, {v(M+5)}')
            S(dppadd(M, M + 2, M)); S(dppadd(M + 1, M + 3, M + 1))
            S(f'v_exp_f32 {v(X+2)}, {v(M+4)}\nv_exp_f32 {v(X+3)}, {v(M+5)}\nv_exp_f32 {v(X)}, {v(M)}\nv_exp_f32 {v(X+1)}, {v(M+1)}')
            S(f'v_cvt_pk_bf16_f32 {v(X+2)}, {v(X+2)}, {v(X+3)}\nv_cvt_pk_bf16_f32 {v(X)}, {v(X)}, {v(X+1)}')
            S(f'ds_write2st64_b32 {v(Q0)}, {v(X)}, {v(X+2)} offset0:{L_PX//256} offset1:{L_PM//256}', tag='pw')
            Vp(4, pw[K], [mov2(M + 2, M + 4)])
        else:
            for x in tr[:4]: S(x)
            Vp(2, tr[4:6] if kw else [])
            S(MF32(M, K, X))
            if kw: S(tr[6])
            S(MF32(M, K + 4, X + 4, M))
            if kw: S(tr[7])
            Vp(2, pw[K])
            S(dppadd(M, M + 2, M)); S(dppadd(M + 1, M + 3, M + 1))
            expP(S)
            for x in vpost: S(x)
            S.gap([pubv])
        assert vi[0] == 8
        S.wait(tag='pw'); S('s_barrier')
        self.stamp(S)
        LL = X + 8
        rdP = f'ds_read_b128 {v(X,4)}, {v(PR)} offset:{L_PX}\nds_read_b64 {v(X+4,2)}, {v(PR)} offset:{L_PM + 8}'
        S(rdP)
        if mw:
            for x in vpost: S(x)
        if kw and 'p' not in ko:
            S(f's_mov_b64 exec, {s(sHALF,2)}')
            for j in range(2): S(f'buffer_store_dwordx4 {v(X + 8 + 4*j, 4)}, {v(P16)}, {SRD}, {s(sKM)} offen offset:{j*1024} sc1')
            S('s_mov_b64 exec, -1')
        wacc = [VA, VA + 4, X + 12]
        def pv(T, first):
            zz = [z2(VA + 2*i) for i in range(4)] + [z2(X + 12), z2(X + 14)] if first else [None]*6
            zb = pw[ZB] if first else [None]*2
            T(MF32(LL, ONES, X)); T.gap(zz[:2])
            T(MF32(Y, V, X)); T.gap(zz[2:4])
            T(MF16(LL, ONES, X + 4, LL)); T.gap([zb[0], zz[4] if nt == 3 else None])
            T(MF32(Y + 4, V + 4, X)); T.gap([zb[1], zz[5] if nt == 3 else None])
            T(MF16(Y, VQ, X + 4, Y))
            if first: T(f'v_subrev_u32 {v(LL+2)}, {s(sLo)}, {v(LL)}\nv_cmp_le_u32 vcc, {s(sRng)}, {v(LL+2)}')
            T(MF16(Y + 4, VP, X + 4, Y + 4))
            T(f'v_rcp_f32 {v(LL+1)}, {v(LL)}')
        OP = M + 4
        def norm(T):
            for t in range(2):
                for i in range(4): T(f'v_mul_f32 {v(Y + 4*t + i)}, {v(LL+1)}, {v(Y + 4*t + i)}')
                for i in range(2): T(f'v_cvt_pk_bf16_f32 {v(OP + 2*t + i)}, {v(Y + 4*t + 2*i)}, {v(Y + 4*t + 2*i + 1)}')
            T(f'ds_write_b128 {v(P16)}, {v(OP,4)} offset:{L_O + w*1024}', tag='ow')
        pv(S, True); norm(S); br('fb')(S)
        self.stamp(S)
        fb = Stream(); fb.label(f'{p}_fb'); fb.force_wait(lg=0); fb('s_nop 11')
        fb('s_barrier')
        fb(f'v_max_f32 {v(X)}, {v(M)}, {v(M+1)}')
        if mw: fb(f'v_max3_f32 {v(X)}, {v(X)}, {v(M+2)}, {v(M+3)}')
        fb(f'ds_write_b32 {v(P16)}, {v(X)} offset:{L_MX + 4*w}')
        fb.wait(lg=0); fb('s_barrier')
        fb(f'v_and_b32 {v(Y)}, 0xff, {v(P16)}')
        for g in range(4): fb(f'ds_read_b128 {v(X + 4*g, 4)}, {v(Y)} offset:{L_MX + g*256}')
        fb(f'v_max_f32 {v(Y)}, {v(X)}, {v(X+1)}')
        for i in range(1, 8): fb(f'v_max3_f32 {v(Y)}, {v(Y)}, {v(X+2*i)}, {v(X+2*i+1)}')
        for i in range(4 if mw else 2): fb(f'v_sub_f32 {v(M+i)}, {v(M+i)}, {v(Y)}')
        expP(fb)
        zero(fb, X + 12, 4)
        for x in vpost[6:]: fb(x)
        fb.wait(lg=0); fb('s_barrier')
        fb(rdP); pv(fb, False); norm(fb); fb.force_wait(lg=0); fb('s_nop 11'); fb(f's_branch {p}_fbd')
        O.append(fb.text())
        ofr = {w: OP}
        for j in (1, 2, 3): ofr[w ^ j] = X + 4*(j - 1)
        nx = 32*16384 if 'k' not in ko else 0
        WB = lambda i: P.reg(P.wo, P.wo_nr, i)
        if mw: S.gap([pubv])
        S(f's_cmp_eq_u32 {s(sSTEP)}, {s(sNST)}\ns_cbranch_scc1 {p}_exit')
        for i in range(2):
            S(SMF(wacc[i], OP, WB(i), wo=True)); S.gap([f's_add_u32 {s((sT0, sT1)[i])}, {s(sPst)}, {65536*(i+1)}', pw[V][i]])
        S.wait(tag='ow'); S('s_barrier')
        for j in (1, 2, 3): S(f'ds_read_b128 {v(ofr[w ^ j],4)}, {v(P16)} offset:{L_O + (w ^ j)*1024}')
        if nt == 3: S(SMF(wacc[2], OP, WB(2), wo=True))
        S(f's_add_u32 {s(sKML)}, {s(sKML)}, {16*16384}\n{swz(sKM, sKML)}\ns_add_u32 {s(sSTEP)}, {s(sSTEP)}, 1')
        def put(i):
            ac = wacc[i]
            return [f'v_cvt_pk_bf16_f32 {v(ac)}, {v(ac)}, {v(ac+1)}', f'v_and_or_b32 {v(ac)}, {v(ac)}, -2, {s(sPar)}',
                    f'v_cvt_pk_bf16_f32 {v(ac+1)}, {v(ac+2)}, {v(ac+3)}',
                    (f'buffer_store_dwordx2 {v(ac,2)}, {v(PP)}, {SRD}, {s((sPst, sT0, sT1)[i])} offen{sc}', f'st{i}')]
        for i in range(nt):
            for j in (1, 2, 3):
                S(SMF(wacc[i], ofr[w ^ j], WB(nt + 3*i + j - 1), wo=True))
                if i and j == (3 if i == nt - 1 else 2): S.gap([put(i - 1)])
        S.gap([put(nt - 1)])
        self.stamp(S)
        S(self.nextKV())
        E = self.opt('E', 1)
        if w in RED:
            if RED[w]:
                S(f's_cmp_ge_u32 {s(sHEAD)}, 8\ns_cbranch_scc1 {p}_nored')
                ob = Stream(); ob.label(f'{p}_nored'); ob.force_wait(vm=0)
                if 'I' not in ko: self.idle(ob)
                ob(f's_branch {p}_redd'); O.append(ob.text())
            SEL, RA = M, M + 4
            S(f'v_mov_b32 {v(RA)}, 0x3f80\nv_cndmask_b32 {v(RA)}, {v(RA)}, 1.0, {s(sMK+8,2)}')
            for d in range(4): S(f'v_cndmask_b32 {v(SEL+d)}, 0, {v(RA)}, {s(sMK+2*d,2)}')
            if 'U' in ko:
                for _ in range(self.opt('U', 0) + (1 - RED[w])*self.opt('u', 0)):
                    S(f'ds_read_b128 {v(RB,4)}, {v(P16)}'); S.wait(lg=0)
            else: S.wait(tag='st%d' % self.opt('RS'[RED[w]], nt - 1))
            self.stamp(S)
            NS = self.opt('B', 1)
            sets = (X, K, VA)[:NS]
            ld1 = lambda b: [f'buffer_load_dwordx4 {v(b + 4*i,4)}, {v(P16)}, {SRD}, {s(sUpoll)} offen offset:{i*1024} sc1' for i in range(4)]
            def red1(T, b):
                T.hoist = False
                for i in range(4):
                    T(MF32(RA, SEL, b + 4*i, RA if i else None))
                    T(f'v_bitop3_b32 {v(b + 4*i + 1)}, {v(b + 4*i)}, {v(b + 4*i + 2)}, {s(sPar)} bitop3:0x7e')
                    if i == 2: T(f'v_or3_b32 {v(b+1)}, {v(b+1)}, {v(b+5)}, {v(b+9)}\nv_and_b32 {v(b+1)}, 1, {v(b+1)}')
                T(f'v_and_or_b32 {v(b+1)}, {v(b+13)}, 1, {v(b+1)}\nv_cmp_ne_u32 vcc, 0, {v(b+1)}')
                T.hoist = True
            fin = f'''v_add_f32_dpp {v(RA+2)}, {v(RA)}, {v(RA)} row_ror:8 row_mask:0xf bank_mask:0xf
            v_add_f32_dpp {v(RA+3)}, {v(RA+1)}, {v(RA+1)} row_ror:8 row_mask:0xf bank_mask:0xf
            v_cvt_pk_bf16_f32 {v(Q2)}, {v(RA+2)}, {v(RA+3)}
            buffer_store_dword {v(Q2)}, {v(PM)}, {SRD}, {s(sMout)} offen{sc}
            buffer_store_dword {v(Q2)}, {v(PM)}, {SRD}, {s(sRout)} offen sc1'''
            if NS == 1:
                for x in ld1(X): S(x)
                if 'I' not in ko: self.idle(S)
                red1(S, X); br('r1')(S)
                S(fin)
                ob = Stream(); ob.label(f'{p}_r1')
                if self.stamps: ob('s_add_u32 s89, s89, 1')
                for x in ld1(X): ob(x)
                red1(ob, X); ob(f's_cbranch_vccz {p}_r1d'); self.budget(ob, f'{p}_r1', f'{p}_r1d'); O.append(ob.text())
            else:
                assert 'I' in ko
                for j in range(NS - 1):
                    for x in ld1(sets[j]): S(x)
                    for _ in range(self.opt('J', 1)):
                        S(f'ds_read_b128 {v(RB,4)}, {v(P16)}'); S.wait(lg=0)
                S.label(f'{p}_r1')
                for j in range(NS):
                    for x in ld1(sets[(j - 1) % NS]): S(x, tag='junk')
                    red1(S, sets[j])
                    if 'x' in ko:
                        f = [x.strip() for x in fin.split('\n')]
                        S(f[0]); S(f[1]); S('s_cmp_eq_u64 vcc, 0'); S(f[2]); S('s_cselect_b64 exec, -1, 0')
                        S.raw('    ' + f[3] + '\n    ' + f[4]); S('s_mov_b64 exec, -1')
                    S(f's_cbranch_vccz {p}_r1d')
                    if hd: S(f's_branch {p}_r1d')
                    st1 = S.state()
                    if self.stamps: S('s_add_u32 s89, s89, 1')
                self.budget(S, f'{p}_r1')
                if 'x' in ko: S.raw('    ' + f[3] + '\n    ' + f[4])
                S.label(f'{p}_r1d')
                S.vm, S.lg, S.hist = st1
                if 'x' in ko: S.vm += [(set(), None)]*2
                else: S(fin)
            self.stamp(S)
            if RED[w]: S.label(f'{p}_redd')
        else:
            S.wait(vm=0); self.stamp(S)
            if 'I' not in ko: self.idle(S)
            self.stamp(S)
            if fl:
                S(f's_add_u32 {s(sT0)}, {s(sSTEP)}, 2\ns_min_u32 {s(sT0)}, {s(sT0)}, 64\nv_cmp_gt_u32 vcc, {s(sT0)}, {v(FLG)}')
                br('kv')(S)
                ob = Stream(); ob.label(f'{p}_kv'); ob.gap([ldF]); ob(f'v_cmp_gt_u32 vcc, {s(sT0)}, {v(FLG)}\ns_cbranch_vccz {p}_kvd')
                self.budget(ob, f'{p}_kv', f'{p}_kvd'); O.append(ob.text())
        S(f's_xor_b32 {s(sPar)}, {s(sPar)}, 1')
        if self.stamps:
            S.force_wait(lg=0)
            S(f's_mov_b32 m0, {s(sSTEP)}')
            for i in range(8): S(f'v_writelane_b32 {v(248 + i)}, {s(sST + 2*i)}, m0')
        if w in RED: S.wait(vm=2)
        if w == 2 and E == 1: S.wait(vm=1)
        if E < 2: S('s_barrier')
        S(f's_branch {p}_top')
        S.raw(f'{p}_exit:\n    s_waitcnt vmcnt(0) lgkmcnt(0)\n    s_barrier')
        if w == 3: S.raw(f'    s_add_u32 {s(sSTEP)}, {s(sSTEP)}, 1\n    v_mov_b32 {v(Q1)}, {s(sSTEP)}\n    {stF}')

    def loop_text(self):
        S1 = Stream(); self.body(S1, [])
        O = []
        S2 = Stream(S1.state()); self.body(S2, O)
        assert S1.vm == S2.vm and S1.lg == S2.lg, (S1.vm, S2.vm)
        t = S2.text()
        if self.stamps.startswith('t'):
            lo, st = map(int, self.stamps[1:].split('x'))
            out = []; n = -1; k = 0
            for l in t.split('\n'):
                if l == f'{self.p}_pad:': n = 0
                if n >= 0 and l.startswith('    '):
                    if n >= lo and (n - lo) % st == 0 and k < 8: out.append(f'    s_memtime {s(sST + 2*k, 2)}'); k += 1
                    n += 1
                out.append(l)
            t = '\n'.join(out)
        return t, ''.join(O)
```

```python
from sched import Stream
from asmlib import v, a, s, r
from layout import *
WS = 4; SRD = s(WS, 4)
sTEAM, sMEM, sWAVE, sBUD = 3, 12, 13, 15
DBG = 72
_n = [0]
def lab(x):
    _n[0] += 1
    return f'L{x}{_n[0]}'
def MF32(d, A, B, C=None):
    return f'v_mfma_f32_16x16x32_bf16 {r(d,4)}, {r(A,4)}, {r(B,4)}, {r(C,4) if C is not None else 0}'
def MF16(d, A, B, C=None):
    return f'v_mfma_f32_16x16x16_bf16 {r(d,4)}, {r(A,2)}, {r(B,2)}, {r(C,4) if C is not None else 0}'
def make_srd(S, reg, arg, nbytes):
    S(f's_load_dwordx2 {s(reg,2)}, s[0:1], {ARG[arg]}\ns_waitcnt lgkmcnt(0)\ns_mov_b32 {s(reg+2)}, {nbytes}\ns_mov_b32 {s(reg+3)}, 0x20000')
def spin_tail(S, again):
    S(f's_sub_u32 {s(sBUD)}, {s(sBUD)}, 1\ns_cbranch_scc0 {again}\ns_mov_b32 {s(sBUD)}, 0')
def wait_flags(S, tmp, n, vaddr, soff, target, lanes=64, srd=SRD, off=0):
    L = lab('wf'); D = L + 'd'
    ld = {1: 'dword', 2: 'dwordx2', 4: 'dwordx4'}[n]
    if lanes < 64: S(f's_mov_b32 exec_lo, {hex((1 << min(lanes, 32)) - 1)}\ns_mov_b32 exec_hi, {hex((1 << max(lanes - 32, 0)) - 1)}')
    S.wait(vm=0)
    S.label(L)
    S(f'buffer_load_{ld} {v(tmp, n)}, {v(vaddr)}, {srd}, {soff} offen offset:{off} sc1')
    S.force_wait(vm=0)
    if n == 2: S(f'v_min_u32 {v(tmp)}, {v(tmp)}, {v(tmp+1)}')
    if n == 4: S(f'v_min3_u32 {v(tmp)}, {v(tmp)}, {v(tmp+1)}, {v(tmp+2)}\nv_min_u32 {v(tmp)}, {v(tmp)}, {v(tmp+3)}')
    S(f'v_cmp_gt_u32 vcc, {target}, {v(tmp)}\ns_cbranch_vccz {D}')
    spin_tail(S, L)
    S.label(D)
    if lanes < 64: S('s_mov_b64 exec, -1')
def set_flag(S, tmp, soff, val, sc=' sc1', off=0):
    S(f'v_mov_b32 {v(tmp)}, {val}\nv_mov_b32 {v(tmp+1)}, 0\ns_mov_b64 exec, 1')
    S(f'buffer_store_dword {v(tmp)}, {v(tmp+1)}, {SRD}, {soff} offen offset:{off}{sc}')
    S('s_mov_b64 exec, -1')
def wait_init(S, tmp, off=DBG_INIT, n=2):
    S(f'v_mov_b32 {v(tmp+1)}, 0')
    wait_flags(S, tmp, 1, tmp + 1, 0, n, lanes=1, srd=s(DBG, 4), off=off)
def xsum(S, x, t, op='add', row8=False, row421=False):
    o = f'v_{op}_f32'
    if row421:
        for k in (1, 2, 4): S(f'{o}_dpp {v(x)}, {v(x)}, {v(x)} row_ror:{k} row_mask:0xf bank_mask:0xf')
    if row8: S(f'{o}_dpp {v(x)}, {v(x)}, {v(x)} row_ror:8 row_mask:0xf bank_mask:0xf')
    for sw in ('16', '32'):
        S(f'v_mov_b32 {v(t)}, {v(x)}\nv_permlane{sw}_swap_b32 {v(x)}, {v(t)}\n{o} {v(x)}, {v(x)}, {v(t)}')
def unpack(S, lo, hi, src):
    S(f'v_and_b32 {v(hi)}, 0xffff0000, {v(src)}\nv_lshlrev_b32 {v(lo)}, 16, {v(src)}')
LOG2E = f2u(1.4426950408889634)

def tstamp(S, k, tmp=8, cyc=False, idx=None):
    S.force_wait(lg=0)
    S(f'''{'s_memtime' if cyc else 's_memrealtime'} s[70:71]
    s_waitcnt lgkmcnt(0)
    s_lshl_b32 s71, {s(sTEAM)}, 5
    s_add_u32 s71, s71, {s(sMEM)}
    s_lshl_b32 s71, s71, 2
    s_add_u32 s71, s71, {s(sWAVE)}
    s_lshl_b32 s71, s71, 8
    s_add_u32 s71, s71, {k}''')
    if idx is not None: S(f's_add_u32 s71, s71, {s(idx)}')
    S(f's_lshl_b32 s71, s71, 2\ns_add_u32 s71, s71, {OFF_DIAG}')
    set_flag(S, tmp, 's71', 's70', '')

def entry(S, code=True):
    S(f'''
    s_cmp_ge_u32 s2, 256
    s_cbranch_scc1 L_end
    s_load_dwordx4 s[72:75], s[0:1], {ARG['dbg']}
    s_getreg_b32 {s(sTEAM)}, hwreg(HW_REG_XCC_ID, 0, 3)
    v_lshrrev_b32 v1, 6, v0
    v_readfirstlane_b32 {s(sWAVE)}, v1
    v_mov_b32 v3, 0
    v_mov_b32 v2, 1
    s_waitcnt lgkmcnt(0)
    s_mov_b32 s4, s74
    s_mov_b32 s5, s75
    s_mov_b32 s6, {WS_BYTES}
    s_mov_b32 s7, 0x20000
    s_mov_b32 s74, 256
    s_mov_b32 s75, 0x20000
    s_mov_b32 {s(sBUD)}, {BUDGET}
    s_mov_b64 exec, 1
    s_cmp_lg_u32 {s(sWAVE)}, 0
    s_cbranch_scc1 L_not0
    s_lshl_b32 s24, {s(sTEAM)}, 5
    buffer_atomic_add v2, v3, s[72:75], s24 offen sc0
    s_waitcnt vmcnt(0)
    ds_write_b32 v3, v2
    L_not0:
    s_waitcnt lgkmcnt(0)
    s_mov_b64 exec, -1
    ''')
    if code:
        S(f'''s_cmp_lg_u32 {s(sWAVE)}, 1
        s_cbranch_scc1 L_nopf
        s_getpc_b64 s[8:9]
        L_pc:
        s_mov_b32 s10, L_code_end-L_pc
        s_mov_b32 s11, 0x20000
        s_lshr_b32 s24, s2, 3
        s_lshl_b32 s24, s24, 12
        v_and_b32 v5, 31, v0
        v_lshlrev_b32 v5, 7, v5
        v_add_u32 v5, s24, v5''')
        S.raw('    buffer_load_dword a255, v5, s[8:11], 0 offen')
        S('L_nopf:')
    S(f'''
    s_barrier
    v_and_b32 v0, 63, v0
    ds_read_b32 v4, v3
    s_waitcnt lgkmcnt(0)
    v_readfirstlane_b32 {s(sMEM)}, v4
    s_barrier
    s_cmp_ge_u32 {s(sMEM)}, 32
    s_cbranch_scc1 L_end
    ''')
def probe_near(S, tmp, idx):
    p = lab('pn')
    offs = [C2_X + 0x80000 + ph*0x2000 + j for j in (0, 0x1400, 0x4800, 0x5c00) for ph in range(2)]
    S(f's_lshl_b32 s26, {s(idx)}, 7\ns_add_u32 s26, s26, {C2_X}\ns_add_u32 s24, s4, s26\ns_addc_u32 s25, s5, 0')
    for i, o in enumerate(offs): S(f's_load_dword s{36+i}, s[24:25], {o - C2_X} glc')
    S('s_mov_b32 s28, -1\ns_mov_b32 s29, -1\ns_mov_b32 s32, 1\ns_waitcnt lgkmcnt(0)')
    S.label(p + 'r')
    for i, o in enumerate(offs):
        L = f'{p}s{i}'
        S(f's_not_b32 s30, s{36+i}\ns_mov_b32 s{26 + (i & 1)}, 0')
        S.raw(f'    s_load_dword s30, s[24:25], {o - C2_X} glc')
        S(f'''{L}:
        s_add_u32 s{26 + (i & 1)}, s{26 + (i & 1)}, 0x100000
        s_cbranch_scc1 {L}x
        s_cmp_eq_u32 s30, s{36+i}
        s_cbranch_scc0 {L}
        {L}x:
        s_waitcnt lgkmcnt(0)''')
        if i & 1: S('s_min_u32 s28, s28, s26\ns_min_u32 s29, s29, s27')
    S(f'''s_sub_u32 s32, s32, 1
    s_cbranch_scc0 {p}r
    s_cmp_gt_u32 s29, s28
    s_cselect_b32 s24, 8, 0
    s_cmp_eq_u32 s29, s28
    s_cselect_b32 s24, 4, s24
    s_add_u32 s24, s24, 0x10000
    v_mov_b32 {v(tmp)}, s24
    s_mov_b64 exec, 1''')
    S.raw(f'    buffer_atomic_add {v(tmp)}, off, s[72:75], 0 offset:{DBG_NEAR}')
    S('s_mov_b64 exec, -1')
def get_near(S, tmp, dst):
    S(f'v_mov_b32 {v(tmp+1)}, 0')
    wait_flags(S, tmp, 1, tmp + 1, 0, 0x80000, lanes=1, srd=s(DBG, 4), off=DBG_NEAR)
    S(f'v_readfirstlane_b32 {s(dst)}, {v(tmp)}\ns_nop 3\ns_and_b32 {s(dst)}, {s(dst)}, 0x60\ns_cselect_b32 {s(dst)}, 0x2000, 0')
BUDGET = 300000

def swz(dst, src, tmp=None):
    t = dst if tmp is None else tmp
    assert t != src
    return f's_lshr_b32 {s(t)}, {s(src)}, 8\ns_and_b32 {s(t)}, {s(t)}, 0x2000\ns_xor_b32 {s(dst)}, {s(src)}, {s(t)}'

def service(S, diag=False):
    J, T0, T1 = 16, 17, 18
    ring, done, np_ = lab('sv'), lab('sv'), lab('sv')
    S(f'''s_sub_u32 {s(J)}, {s(sMEM)}, 24
    s_lshl_b32 {s(J)}, {s(J)}, 1
    s_add_u32 {s(J)}, {s(J)}, {s(sTEAM)}
    s_sub_u32 {s(J)}, {s(J)}, 1
    s_cmp_gt_u32 {s(J)}, 14
    s_cbranch_scc1 L_end
    s_lshl_b32 {s(T0)}, {s(sWAVE)}, 6
    v_add_u32 v2, {s(T0)}, v0
    v_lshlrev_b32 v1, 4, v2
    s_cmp_le_u32 {s(J)}, 2
    s_cselect_b32 s19, {DBG_INIT}, {DBG_RING}
    s_sub_u32 s20, {s(J)}, 1
    s_lshl_b32 s20, s20, 15
    s_sub_u32 {s(J)}, {s(J)}, 3
    s_cmp_le_u32 {s(J)}, 1
    s_cbranch_scc1 {ring}
    s_sub_u32 {s(T0)}, {s(J)}, 2
    s_and_b32 {s(T1)}, {s(T0)}, 1
    s_lshl_b32 {s(T1)}, {s(T1)}, 19
    s_lshr_b32 {s(T0)}, {s(T0)}, 1
    s_lshl_b32 {s(T0)}, {s(T0)}, 15
    s_add_u32 {s(T0)}, {s(T0)}, {s(T1)}
    s_add_u32 {s(T0)}, {s(T0)}, {C2_P}
    s_cmp_eq_u32 s19, {DBG_INIT}
    s_cselect_b32 {s(T0)}, s20, {s(T0)}
    v_mov_b64 v[4:5], 0
    v_mov_b64 v[6:7], 0''')
    for i in range(8): S(f'buffer_store_dwordx4 v[4:7], v1, {SRD}, {s(T0)} offen sc1\ns_add_u32 {s(T0)}, {s(T0)}, 4096')
    S(f's_branch {done}\n{ring}:')
    make_srd(S, 8, 'mem0', 10240)
    S(f'''s_mul_i32 {s(T1)}, {s(J)}, 640
    v_bfe_u32 v3, v2, 1, 3
    v_mul_u32_u24 v3, 1280, v3
    v_lshrrev_b32 v4, 4, v2
    v_lshl_add_u32 v3, v4, 5, v3
    v_and_b32 v4, 1, v2
    v_lshl_add_u32 v3, v4, 4, v3
    v_add_u32 v3, {s(T1)}, v3
    buffer_load_dwordx4 v[8:11], v3, s[8:11], 0 offen
    buffer_load_dwordx4 v[12:15], v3, s[8:11], 0 offen offset:512
    v_mov_b64 v[4:5], -1
    v_mov_b64 v[6:7], -1
    s_lshl_b32 {s(J)}, {s(J)}, 17''')
    for base in (C2_M, C2_X, C2_X + 8192):
        for slot in (1, 2, 3, 0):
            for h in range(2):
                S(f's_add_u32 {s(T0)}, {s(J)}, {base + slot*MB + h*4096}')
                S(f'buffer_store_dwordx4 {v(8 + 4*h if slot == 0 else 4, 4)}, v1, {SRD}, {s(T0)} offen sc1')
    S(f'{done}:\ns_waitcnt vmcnt(0)')
    if diag: tstamp(S, 6)
    S(f'''s_barrier
    s_cmp_lg_u32 {s(sWAVE)}, 0
    s_cbranch_scc1 L_end
    v_mov_b32 v2, 1
    s_mov_b64 exec, 1
    buffer_atomic_add v2, off, s[72:75], s19
    s_branch L_end''')

OPT = dict(postwait=2, qwait=2)
```

```python
PB = 0x80000
MB = 0x4000
NG = 7
OFF_FLAG = 0
OFF_M = 0x20000
OFF_P = 0x100000
OFF_G = 0x200000
OFF_H = 0x400000
OFF_JUNK = 0x700000
OFF_KV = 0x800000
KVB = 32768
OFF_KM = OFF_KV + 64 * 32 * KVB
KMB = 4096
OFF_END = OFF_KM + 64 * 16 * 16384
WS_BYTES = 268435456
SENT = 0xFFFFFFFF
FL_KV = 0x0000
FL_KM = 0x1000
FL_T = 0x2000
FL_MOD = 0x4000
FL_H = 0x8000
OFF_MOD = 0x10000
TS = 0x10000
YS = 1296
OFF_PA = 0x6000000
TEAMB = 0x400000
PA_B = 32 * TS
OFF_Y = 0x5800000
C2_P = 0x100000
C2_M = 0x20000
C2_X = 0x200000
C2_V = 0x300000
C2_C = 0x300000
OFF_DIAG = 0x8000000
NPOST = 4
DBG_OVER = 44
DBG_RING = 56
DBG_NEAR = 52
DBG_INIT = 48
import struct, math
def f2u(x): return struct.unpack('<I', struct.pack('<f', x))[0]
QSCALE = f2u(math.log2(math.e) / math.sqrt(128.0))
ARG = dict(x=0, mem0=8, Wq=16, Wk=24, Wv=32, Wo=40, w1=64, b1=72, w2=80, b2=88, c=96, wmod=104, out=112, dbg=120, ws=128)
```

```python
from common import *
from pre import sNEAR, sKMB
XD, WD = 76, 8
sSEG, sU, sT0, sT1, sT2, sPA, sPAr, sFT, sCS, sNEG, sQT, sHH, sY, sFK, sPRE, sT3 = range(16, 32)
sMSK = 32
sPM = 48
sA, sTOK = 50, 51
P16, P4, P8, PST, PST1, PRD, PRD1, PRW, PRS = range(1, 10)
PK, PKM, PX, PO, PQ, PV = range(10, 16)
PY, PH = 10, 11
SEL, MODV = 16, 20
T0 = 48
def WR(f): return 256 + 4*f if f < 64 else 192 + 4*(f - 64)
L_O, L_R, L_IN = 0, 16384, 32768
L_Y, L_H, L_R2 = 0, 45056, 53248
F_A, F_Y, F_B, F_D = 0, 512, 1024, 1536

def consts(S, stage):
    n, g, t, u = T0, T0 + 1, T0 + 2, T0 + 3
    S(f'''
    s_and_b32 {s(sA)}, {s(sMEM)}, 15
    s_and_b32 {s(sQT)}, {s(sWAVE)}, 1
    s_lshr_b32 {s(sHH)}, {s(sWAVE)}, 1
    s_lshl_b32 {s(sTOK)}, {s(sA)}, 1
    s_add_u32 {s(sTOK)}, {s(sTOK)}, {s(sHH)}
    v_and_b32 {v(n)}, 15, v0
    v_lshrrev_b32 {v(g)}, 4, v0
    v_lshlrev_b32 {v(P16)}, 4, v0
    v_lshlrev_b32 {v(P4)}, 2, v0
    v_lshlrev_b32 {v(P8)}, 3, v0
    v_mul_u32_u24 {v(t)}, {4*TS}, {v(g)}
    v_lshl_add_u32 {v(PST)}, {v(n)}, 4, {v(t)}
    v_lshl_add_u32 {v(PST1)}, {v(n)}, 2, {v(t)}
    v_mul_u32_u24 {v(t)}, 1280, {v(g)}
    v_lshl_add_u32 {v(PRD)}, {v(n)}, 4, {v(t)}
    v_lshlrev_b32 {v(t)}, 4, {v(g)}
    v_lshl_add_u32 {v(PRW)}, {v(n)}, 5, {v(t)}
    s_mul_i32 {s(sT0)}, {s(sWAVE)}, 2560
    v_add_u32 {v(PRW)}, {s(sT0)}, {v(PRW)}
    v_add_u32 {v(PRS)}, {s(sT0)}, {v(P8)}
    s_mov_b32 {s(sPM)}, 0x05040100
    s_mov_b32 {s(sPM+1)}, 0x07060302
    s_sub_u32 {s(sSEG)}, {s(sTEAM)}, {8 - NPOST}
    s_mul_i32 {s(sPA)}, {s(sSEG)}, {TEAMB}
    s_add_u32 {s(sPA)}, {s(sPA)}, {OFF_PA + (PA_B + 0x2000 if stage == 2 else 0)}
    s_xor_b32 {s(sPA)}, {s(sPA)}, {s(sNEAR)}
    s_lshl_b32 {s(sY)}, {s(sSEG)}, 18
    s_add_u32 {s(sY)}, {s(sY)}, {OFF_Y}
    s_mul_i32 {s(sT0)}, {s(sTOK)}, {TS}
    s_lshl_b32 {s(sT1)}, {s(sQT)}, 15
    s_add_u32 {s(sPAr)}, {s(sPA)}, {s(sT0)}
    s_add_u32 {s(sPAr)}, {s(sPAr)}, {s(sT1)}
    s_lshr_b32 {s(sT0)}, {s(sA)}, 2
    s_lshl_b32 {s(sT0)}, {s(sT0)}, 14
    s_add_u32 {s(sPA)}, {s(sPA)}, {s(sT0)}
    s_and_b32 {s(sT0)}, {s(sA)}, 3
    s_mul_i32 {s(sT0)}, {s(sT0)}, 1280
    s_mul_i32 {s(sT1)}, {s(sWAVE)}, 320
    s_add_u32 {s(sPA)}, {s(sPA)}, {s(sT0)}
    s_add_u32 {s(sPA)}, {s(sPA)}, {s(sT1)}
    s_lshl_b32 {s(sFT)}, {s(sSEG)}, 11
    s_add_u32 {s(sFT)}, {s(sFT)}, {FL_T}
    s_mov_b32 {s(sU)}, 1
    ''')
    if stage == 1:
        S(f'''
        v_mov_b32 {v(PRD1)}, {v(PRD)}
        v_lshrrev_b32 {v(t)}, 2, {v(n)}
        v_lshlrev_b32 {v(t)}, 6, {v(t)}
        v_lshl_add_u32 {v(t)}, {v(g)}, 8, {v(t)}
        v_and_b32 {v(u)}, 1, {v(n)}
        v_lshl_add_u32 {v(PKM)}, {v(u)}, 4, {v(t)}
        v_bfe_u32 {v(u)}, {v(n)}, 1, 1
        v_lshl_add_u32 {v(PK)}, {v(u)}, 11, {v(PKM)}
        v_lshrrev_b32 {v(t)}, 1, {v(g)}
        v_lshlrev_b32 {v(t)}, 6, {v(t)}
        v_lshlrev_b32 {v(u)}, 3, {v(n)}
        v_xor_b32 {v(t)}, {v(t)}, {v(u)}
        v_lshl_add_u32 {v(PX)}, {v(g)}, 7, {v(t)}
        s_lshl_b32 {s(sT0)}, {s(sQT)}, 13
        s_lshl_b32 {s(sT1)}, {s(sHH)}, 12
        s_add_u32 {s(sT0)}, {s(sT0)}, {s(sT1)}
        v_add_u32 {v(PO)}, {s(sT0)}, {v(P16)}
        s_mul_i32 {s(sT0)}, {s(sHH)}, 24576
        s_add_u32 {s(sT0)}, {s(sT0)}, {L_IN}
        v_add_u32 {v(PV)}, {s(sT0)}, {v(P16)}
        v_add_u32 {v(PK)}, {s(sT0)}, {v(PK)}
        s_lshl_b32 {s(sT1)}, {s(sQT)}, 12
        v_add_u32 {v(PQ)}, {s(sT1)}, {v(PV)}
        s_mov_b32 {s(sCS)}, {QSCALE}
        s_mov_b32 {s(sNEG)}, {f2u(-1e9 * 1.4426950408889634)}
        s_lshl_b32 {s(sFK)}, {s(sTOK)}, 7
        s_add_u32 {s(sFK)}, {s(sFK)}, {FL_KV}
        s_mov_b32 {s(sPRE)}, 0
        s_lshl_b32 {s(sKMB)}, {s(sA)}, 14
        s_lshl_b32 {s(sT0)}, {s(sHH)}, 12
        s_add_u32 {s(sKMB)}, {s(sKMB)}, {s(sT0)}
        s_add_u32 {s(sKMB)}, {s(sKMB)}, {OFF_KM + 0x2000}
        s_xor_b32 {s(sKMB)}, {s(sKMB)}, {s(sNEAR)}
        s_lshl_b32 {s(sT0)}, {s(sQT)}, 4
        v_add_u32 {v(t)}, {s(sT0)}, {v(n)}
        v_lshlrev_b32 {v(u)}, 2, {v(g)}
        v_sub_u32 {v(t)}, {v(t)}, {v(u)}
        ''')
        for kt in range(2):
            for i in range(4): S(f'v_cmp_le_i32 {s(sMSK + 8*kt + 2*i, 2)}, {16*kt + i}, {v(t)}')
    else:
        S(f'''
        v_mul_u32_u24 {v(t)}, {YS}, {v(n)}
        v_lshl_add_u32 {v(PY)}, {v(g)}, 4, {v(t)}
        s_lshl_b32 {s(sT0)}, {s(sWAVE)}, 10
        v_add_u32 {v(PH)}, {s(sT0)}, {v(P16)}
        s_lshl_b32 {s(sT0)}, {s(sQT)}, 3
        v_add_u32 {v(t)}, {s(sT0)}, {v(g)}
        v_cmp_gt_u32 vcc, 10, {v(t)}
        v_mov_b32 {v(u)}, {WS_BYTES}
        v_cndmask_b32 {v(PRD1)}, {v(u)}, {v(PRD)}, vcc
        ''')
    for d in range(4):
        S(f'''v_mov_b32 {v(SEL+d)}, 0
        v_mov_b32 {v(t)}, 0x3f80
        v_cmp_eq_u32 vcc, {2*d}, {v(n)}
        v_cndmask_b32 {v(SEL+d)}, {v(SEL+d)}, {v(t)}, vcc
        v_mov_b32 {v(t)}, 1.0
        v_cmp_eq_u32 vcc, {2*d+1}, {v(n)}
        v_cndmask_b32 {v(SEL+d)}, {v(SEL+d)}, {v(t)}, vcc''')

def load_perm(S, nch, reg, srow):
    A4, A1, t, NB = T0, T0 + 1, T0 + 2, 3
    S(f'''v_lshrrev_b32 {v(t)}, 4, v0
    v_mul_u32_u24 {v(t)}, {4*1280}, {v(t)}
    s_mul_i32 {s(sT1)}, {s(srow)}, 1280
    s_mul_i32 {s(sT0)}, {s(sWAVE)}, 320
    s_add_u32 {s(sT1)}, {s(sT1)}, {s(sT0)}
    v_add_u32 {v(t)}, {s(sT1)}, {v(t)}
    v_and_b32 {v(A1)}, 15, v0
    v_lshl_add_u32 {v(A4)}, {v(A1)}, 4, {v(t)}
    v_lshl_add_u32 {v(A1)}, {v(A1)}, 2, {v(t)}
    v_add_u32 {v(A1)}, 256, {v(A1)}''')
    def issue(c):
        b = T0 + 8 + 40*(c % NB)
        for i in range(8):
            S(f'buffer_load_dwordx4 {v(b + 4*i, 4)}, {v(A4)}, {s(WD,4)}, 0 offen offset:{(i & 3)*1280}')
            S(f'buffer_load_dword {v(b + 32 + i)}, {v(A1)}, {s(WD,4)}, 0 offen offset:{(i & 3)*1280}')
            if i & 3 == 3: S(f'v_add_u32 {v(A4)}, {16*1280}, {v(A4)}\nv_add_u32 {v(A1)}, {16*1280}, {v(A1)}')
    for c in range(NB): issue(c)
    for c in range(nch):
        b = T0 + 8 + 40*(c % NB)
        for tt in range(10):
            for d in range(4):
                src = (lambda i: b + 4*i + (tt >> 1)) if tt < 8 else (lambda i: b + 32 + i)
                dst = reg(c, tt) + d
                x = dst if dst < 256 else t + (d & 1)
                S(f'v_perm_b32 {v(x)}, {v(src(2*d+1))}, {v(src(2*d))}, {s(sPM + (tt & 1))}')
                if dst >= 256: S(f'v_accvgpr_write_b32 {r(dst)}, {v(x)}')
        if c + NB < nch: issue(c + NB)

def load_mod(S, parts):
    S(f'v_lshlrev_b32 {v(T0+1)}, 7, v0\ns_mov_b32 {s(sT0)}, {FL_MOD + 128*20*parts[0]}')
    wait_flags(S, T0, 1, T0 + 1, s(sT0), 1, lanes=20*len(parts))
    for j, part in enumerate(parts):
        S(f's_mov_b32 {s(sT0)}, {OFF_MOD + part*1280}')
        for i in range(5): S(f'buffer_load_dword {v(MODV + 5*j + i)}, {v(P4)}, {SRD}, {s(sT0)} offen offset:{256*i} sc1')

def gemm_out(S, nk, W, rd, sc):
    FR = T0; AC = [T0 + 32, T0 + 72]; PKD = T0 + 112
    fr = lambda qt, k: FR + 4*((nk*qt + k) % 8)
    def epi(qt):
        out = []
        for i in range(4):
            p = PKD + 6*i
            out += [f'v_cvt_pk_bf16_f32 {v(p + d)}, {v(AC[qt] + 8*d + i)}, {v(AC[qt] + 8*d + 4 + i)}' for d in range(5)]
            out.append(f's_add_u32 {s(sT0)}, {s(sPA)}, {(16*qt + i)*TS}\nbuffer_store_dwordx4 {v(p,4)}, {v(PST)}, {SRD}, {s(sT0)} offen{sc}')
            out.append(f'buffer_store_dword {v(p+4)}, {v(PST1)}, {SRD}, {s(sT0)} offen offset:256{sc}')
        return out
    q = []
    for qt in range(2):
        n = 0
        for k in range(nk):
            for t in range(10):
                S(MF32(AC[qt] + 4*t, fr(qt, k), W(k, t), AC[qt] + 4*t if k else None)); n += 1
                if q and n >= 2 and (nk == 4 or n % 2 == 0): S(q.pop(0))
            if nk == 8 and qt == 0: S(rd(1, k, fr(1, k)))
        assert not q
        q = epi(qt)
    for x in q: S(x)

def reduce_rows(S, lr):
    D, AC = T0, T0 + 40
    for i in range(2):
        S(f's_add_u32 {s(sT0)}, {s(sPAr)}, {i*16384}')
        for t in range(5): S(f'buffer_load_dwordx4 {v(D + 20*i + 4*t, 4)}, {v(PRD + i)}, {SRD}, {s(sT0)} offen offset:{256*t} sc1')
    S.hoist = False
    for i in range(2):
        for t in range(5): S(MF32(AC + 4*t, SEL, D + 20*i + 4*t, AC + 4*t if i else None))
    S.hoist = True
    S('s_mov_b32 exec_hi, 0')
    for t in range(5): S(f'ds_write_b128 {v(PRW)}, {v(AC + 4*t, 4)} offset:{lr + 512*t}')
    S('s_mov_b64 exec, -1')
    S.wait(lg=0); S('s_barrier')

def row_sum(S, R, lr):
    for w in range(2):
        for i in range(5): S(f'ds_read_b64 {v(R + 10*w + 2*i, 2)}, {v(PRS)} offset:{lr + 2560*w + 512*i}')
    for i in range(10): S(f'v_add_f32 {v(R+i)}, {v(R+i)}, {v(R+10+i)}')

def lnorm(S, dst, src, T):
    S(f'v_add_f32 {v(T)}, {v(src)}, {v(src+1)}')
    for i in range(2, 10): S(f'v_add_f32 {v(T)}, {v(T)}, {v(src+i)}')
    xsum(S, T, T + 1, row8=True, row421=True)
    S(f'v_mul_f32 {v(T)}, {f2u(1/640)}, {v(T)}')
    for i in range(10): S(f'v_sub_f32 {v(dst+i)}, {v(src+i)}, {v(T)}')
    S(f'v_mul_f32 {v(T)}, {v(dst)}, {v(dst)}')
    for i in range(1, 10): S(f'v_fmac_f32 {v(T)}, {v(dst+i)}, {v(dst+i)}')
    xsum(S, T, T + 1, row8=True, row421=True)
    S(f'v_mov_b32 {v(T+1)}, {f2u(1e-5)}\nv_fmac_f32 {v(T+1)}, {f2u(1/640)}, {v(T)}\nv_rsq_f32 {v(T)}, {v(T+1)}')
    for i in range(10): S(f'v_mul_f32 {v(dst+i)}, {v(T)}, {v(dst+i)}')

def wave_flag(S, off, sc):
    S(f's_lshl_b32 {s(sT0)}, {s(sA)}, 2\ns_add_u32 {s(sT0)}, {s(sT0)}, {s(sWAVE)}\ns_lshl_b32 {s(sT0)}, {s(sT0)}, 2\ns_add_u32 {s(sT0)}, {s(sT0)}, {s(sFT)}')
    S.wait(vm=0); set_flag(S, T0, s(sT0), s(sU), sc, off=off)

def mk_ts(S, diag):
    def ts(k):
        if diag:
            S(f's_mul_i32 s69, {s(sU)}, 12'); tstamp(S, k, tmp=188, idx=69)
    return ts

X0, XN = 35, 40
def fetch(seg):
    out = [f'''s_lshl_b32 {s(sT3)}, {s(seg)}, 5
    s_add_u32 {s(sT3)}, {s(sT3)}, {s(sTOK)}
    s_lshl_b32 {s(sT1)}, {s(sT3)}, 3
    s_add_u32 {s(sT1)}, {s(sT1)}, {s(sQT)}
    s_lshl_b32 {s(sT1)}, {s(sT1)}, 12
    s_add_u32 {s(sT1)}, {s(sT1)}, {s(sNEAR)}
    s_add_u32 {s(sT1)}, {s(sT1)}, {OFF_KV}
    {swz(sT0, sT1)}
    s_mul_i32 {s(sT1)}, {s(sHH)}, 24576
    s_lshl_b32 m0, {s(sQT)}, 12
    s_add_u32 m0, m0, {s(sT1)}
    s_add_u32 m0, m0, {L_IN}
    s_mul_i32 {s(sT3)}, {s(sT3)}, 1280''']
    for j in range(3):
        if j: out.append(f's_add_u32 m0, m0, 8192\ns_xor_b32 {s(sT0)}, {s(sT0)}, {(0, 0x2000, 0x4000)[j]}')
        out += [f'buffer_load_dwordx4 {v(P16)}, {SRD}, {s(sT0)} offen offset:{1024*i} sc1 lds' for i in range(4)]
    out += [f'buffer_load_dword {v(XN + i)}, {v(P4)}, {s(XD,4)}, {s(sT3)} offen offset:{256*i}' for i in range(5)]
    return out

def unit1(S, sc, diag):
    ts = mk_ts(S, diag)
    Q, K, V, KM, VM, SS, T = T0, T0 + 16, T0 + 48, T0 + 80, T0 + 96, T0 + 104, T0 + 116
    FN = 190
    ts(0)
    have = lab('have')
    S(f's_cmp_lg_u32 {s(sPRE)}, 0\ns_cbranch_scc1 {have}\ns_add_u32 {s(sT1)}, {s(sSEG)}, 1')
    wait_flags(S, T, 1, P16, s(sFK), s(sT1), lanes=6)
    for x in fetch(sSEG): S(x)
    S.wait(vm=0)
    S.label(have)
    S('s_barrier')
    for i in range(4): S(f'ds_read_b128 {v(Q + 4*i, 4)}, {v(PQ)} offset:{1024*i}')
    for kt in range(2):
        for i in range(4): S(f'ds_read_b128 {v(K + 16*kt + 4*i, 4)}, {v(PK)} offset:{8192 + kt*4096 + (i >> 1)*1024 + (i & 1)*32}')
    S(f's_lshl_b32 {s(sT1)}, {s(sSEG)}, 18\ns_add_u32 {s(sT1)}, {s(sT1)}, {s(sKMB)}\n{swz(sT2, sT1)}')
    for i in range(5): S(f'v_mov_b32 {v(X0 + i)}, {v(XN + i)}')
    for kt in range(2):
        for i in range(4):
            S(MF32(SS + 4*kt, K + 16*kt + 4*i, Q + 4*i, SS + 4*kt if i else None))
            S(f'ds_read_b128 {v(V + 16*kt + 4*i, 4)}, {v(PV)} offset:{16384 + 4096*kt + 1024*i}')
    S(f'v_mov_b32 {v(T)}, {s(sNEG)}')
    for i in range(8): S(f'v_cndmask_b32 {v(SS+i)}, {v(T)}, {v(SS+i)}, {s(sMSK + 2*i, 2)}')
    MX = T + 1
    S(f'v_max_f32 {v(MX)}, {v(SS)}, {v(SS+1)}')
    for i in range(2, 8, 2): S(f'v_max3_f32 {v(MX)}, {v(MX)}, {v(SS+i)}, {v(SS+i+1)}')
    S.wait(vm=0, lg=0); ts(1)
    C = lab('kc')
    S(f'''s_lshl_b32 {s(sT3)}, {s(sQT)}, 5
    s_add_u32 {s(sT3)}, {s(sT3)}, {s(sTOK)}
    s_lshl_b32 {s(sT3)}, {s(sT3)}, 6
    s_add_u32 {s(sT3)}, {s(sT3)}, {FL_KM}
    {C}:
    s_load_dword s54, s[4:5], {s(sT3)} glc
    s_waitcnt lgkmcnt(0)
    s_cmp_gt_u32 s54, {s(sSEG)}
    s_cbranch_scc1 {C}d''')
    spin_tail(S, C); S.label(C + 'd'); S('s_barrier')
    for i in range(4): S(f'buffer_load_dwordx4 {v(KM + 4*i, 4)}, {v(PKM)}, {SRD}, {s(sT2)} offen offset:{(i >> 1)*1024 + (i & 1)*32} sc1')
    for i in range(4): S(f'buffer_load_dwordx2 {v(VM + 2*i, 2)}, {v(PX)}, {SRD}, {s(sT2)} offen offset:{2048 + 512*i} sc1')
    S(f'v_and_b32 {v(FN+1)}, 0x70, {v(P16)}\nv_min_u32 {v(FN+1)}, 0x50, {v(FN+1)}')
    S(f'buffer_load_dword {v(FN)}, {v(FN+1)}, {SRD}, {s(sFK)} offen sc1')
    for i in range(4): S(MF32(SS + 8, KM + 4*i, Q + 4*i, SS + 8 if i else None))
    ts(2)
    S(f'v_mul_f32 {v(SS+8)}, {s(sCS)}, {v(SS+8)}\nv_mul_f32 {v(SS+9)}, {s(sCS)}, {v(SS+9)}\nv_max3_f32 {v(MX)}, {v(MX)}, {v(SS+8)}, {v(SS+9)}')
    xsum(S, MX, T, op='max')
    for i in range(10): S(f'v_sub_f32 {v(SS+i)}, {v(SS+i)}, {v(MX)}')
    for i in range(10): S(f'v_exp_f32 {v(SS+i)}, {v(SS+i)}')
    PX_, PM_, ON, LL, OA = KM, KM + 4, KM + 8, KM + 12, K
    S(f'v_mov_b32 {v(PM_+1)}, 0\nv_mov_b32 {v(PM_+2)}, 0')
    for i in range(4): S(f'v_cvt_pk_bf16_f32 {v(PX_+i)}, {v(SS+2*i)}, {v(SS+2*i+1)}\nv_mov_b32 {v(ON+i)}, 0x3f803f80')
    S(f'v_cvt_pk_bf16_f32 {v(PM_)}, {v(SS+8)}, {v(SS+9)}\nv_cvt_pk_bf16_f32 {v(PM_+3)}, {v(SS+8)}, {v(SS+9)}')
    def fin(c):
        return [f'v_mul_f32 {v(OA + 8*c + i)}, {v(T)}, {v(OA + 8*c + i)}' for i in range(8)] + \
               [f'v_cvt_pk_bf16_f32 {v(Q + 4*c + i)}, {v(OA + 8*c + 2*i)}, {v(OA + 8*c + 2*i + 1)}' for i in range(4)] + \
               [f'ds_write_b128 {v(PO)}, {v(Q + 4*c, 4)} offset:{L_O + 1024*c}']
    S(MF32(LL, ON, PX_))
    for i in range(4): S(MF32(OA + 4*i, V + 4*i, PX_))
    S(MF16(LL, ON, PM_, LL))
    for i in range(4): S(MF16(OA + 4*i, VM + 2*(i >> 1), PM_ + 2*(i & 1), OA + 4*i))
    S(f'v_rcp_f32 {v(T)}, {v(LL)}')
    q = fin(0) + fin(1)
    for j in range(8):
        i = 4 + (j & 3)
        S(MF32(OA + 4*i, V + 4*i, PX_) if j < 4 else MF16(OA + 4*i, VM + 2*(i >> 1), PM_ + 2*(i & 1), OA + 4*i))
        for _ in range(2): S(q.pop(0))
    for x in q + fin(2) + fin(3): S(x)
    S.wait(lg=0); S('s_barrier')
    rd = lambda qt, k, reg: f'ds_read_b128 {v(reg, 4)}, {v(P16)} offset:{L_O + 1024*(8*qt + k)}'
    for k in range(8): S(rd(0, k, T0 + 4*k))
    ts(3)
    nop = lab('nopre')
    S(f'''s_add_u32 {s(sSEG)}, {s(sSEG)}, {NPOST}
    v_cmp_ge_u32 vcc, {s(sSEG)}, {v(FN)}
    s_mov_b32 {s(sPRE)}, 0
    s_cbranch_vccnz {nop}
    s_mov_b32 {s(sPRE)}, 1''')
    st0 = S.state()
    for x in fetch(sSEG): S(x)
    S.label(nop); S.vm = st0[0]
    gemm_out(S, 8, lambda k, t: WR(10*k + t), rd, sc)
    ts(4)
    wave_flag(S, F_A, sc)
    wait_flags(S, T0, 1, P4, s(sFT), s(sU), off=F_A)
    ts(5)
    reduce_rows(S, L_R)
    ts(6)
    nw = lab('p5')
    S(f's_cmp_lg_u32 {s(sQT)}, 0\ns_cbranch_scc1 {nw}')
    R, N, X1, T = T0, T0 + 20, T0 + 30, T0 + 40
    DF = T0 + 50
    S(f'buffer_load_dword {v(DF)}, {v(P4)}, {SRD}, {s(sFT)} offen offset:{F_D} sc1')
    row_sum(S, R, L_R)
    for i in range(5):
        unpack(S, T, T + 1, MODV + i); unpack(S, X1 + 2*i, X1 + 2*i + 1, X0 + i)
        S(f'v_fmac_f32 {v(X1+2*i)}, {v(T)}, {v(R+2*i)}\nv_fmac_f32 {v(X1+2*i+1)}, {v(T+1)}, {v(R+2*i+1)}')
        S(f'v_cvt_pk_bf16_f32 {v(X0+i)}, {v(X1+2*i)}, {v(X1+2*i+1)}')
        unpack(S, X1 + 2*i, X1 + 2*i + 1, X0 + i)
    lnorm(S, N, X1, T)
    okd = lab('okd')
    S(f's_max_u32 {s(sT1)}, {s(sU)}, 2\ns_sub_u32 {s(sT1)}, {s(sT1)}, 2\nv_cmp_gt_u32 vcc, {s(sT1)}, {v(DF)}\ns_cbranch_vccz {okd}')
    wait_flags(S, DF, 1, P4, s(sFT), s(sT1), off=F_D)
    S.label(okd)
    S(f's_mul_i32 {s(sT0)}, {s(sTOK)}, 1280\ns_add_u32 {s(sT0)}, {s(sT0)}, {s(sY)}\ns_add_u32 {s(sT0)}, {s(sT0)}, 65536')
    for i in range(5):
        S(f'buffer_store_dword {v(X0+i)}, {v(P4)}, {SRD}, {s(sT0)} offen offset:{256*i}{sc}')
        unpack(S, R + 2*i, R + 2*i + 1, MODV + 5 + i); unpack(S, T, T + 1, MODV + 10 + i)
        S(f'v_fmac_f32 {v(R+2*i)}, {v(T)}, {v(N+2*i)}\nv_fmac_f32 {v(R+2*i+1)}, {v(T+1)}, {v(N+2*i+1)}')
    lnorm(S, N, R, T)
    S(f's_mul_i32 {s(sT0)}, {s(sTOK)}, {YS}\ns_add_u32 {s(sT0)}, {s(sT0)}, {s(sY)}')
    for i in range(5):
        S(f'v_cvt_pk_bf16_f32 {v(R+i)}, {v(N+2*i)}, {v(N+2*i+1)}')
        S(f'buffer_store_dword {v(R+i)}, {v(P4)}, {SRD}, {s(sT0)} offen offset:{256*i}{sc}')
    S(f's_lshl_b32 {s(sT0)}, {s(sTOK)}, 2\ns_add_u32 {s(sT0)}, {s(sT0)}, {s(sFT)}')
    S.wait(vm=0); set_flag(S, T, s(sT0), s(sU), sc, off=F_Y)
    S.label(nw)
    ts(7)
    wait_flags(S, T0, 1, P4, s(sFT), s(sU), lanes=32, off=F_Y)
    ts(8)

def stage1(S, sc, diag):
    consts(S, 1)
    make_srd(S, WD, 'Wo', 4096*1280)
    S(f's_lshl_b32 {s(sT2)}, {s(sA)}, 8')
    load_perm(S, 8, lambda k, t: WR(10*k + t), sT2)
    load_mod(S, (2, 3, 4))
    make_srd(S, XD, 'x', 2048*1280)
    if diag: tstamp(S, 5, tmp=188)
    L = lab('unit'); S.fence(); S.label(L)
    unit1(S, sc, diag == 1)
    S(f's_add_u32 {s(sU)}, {s(sU)}, 1\ns_xor_b32 {s(sY)}, {s(sY)}, 0x20000\ns_cmp_lt_u32 {s(sSEG)}, 64\ns_cbranch_scc1 {L}')
    S.force_wait(vm=0); S('s_endpgm')

B1, XR = 32, 40
W2 = lambda k, t: WR(10*k + t)
W1 = lambda ks, t: WR(40 + 2*ks + t)
def unit2(S, sc, diag):
    ts = mk_ts(S, diag)
    ts(0)
    wait_flags(S, T0, 1, P4, s(sFT), s(sU), lanes=32, off=F_Y)
    ts(1)
    nomlp = lab('nomlp')
    S(f's_cmp_ge_u32 {s(sA)}, 14\ns_cbranch_scc1 {nomlp}a')
    S(f's_mul_i32 {s(sT1)}, {s(sWAVE)}, 11264\ns_add_u32 {s(sT0)}, {s(sY)}, {s(sT1)}')
    for i in range(11):
        if i % 4 == 0: S(f's_add_u32 m0, {s(sT1)}, {L_Y + i*1024}')
        S(f'buffer_load_dwordx4 {v(P16)}, {SRD}, {s(sT0)} offen offset:{(i % 4)*1024} sc1 lds')
        if i % 4 == 3: S(f's_add_u32 {s(sT0)}, {s(sT0)}, 4096')
    S.label(nomlp + 'a')
    S(f's_mul_i32 {s(sT0)}, {s(sTOK)}, 1280\ns_add_u32 {s(sT0)}, {s(sT0)}, {s(sY)}\ns_add_u32 {s(sT0)}, {s(sT0)}, 65536')
    for i in range(5): S(f'buffer_load_dword {v(XR+i)}, {v(P4)}, {SRD}, {s(sT0)} offen offset:{256*i} sc1')
    wave_flag(S, F_D, sc)
    S(f's_cmp_ge_u32 {s(sA)}, 14\ns_cbranch_scc1 {nomlp}')
    S('s_barrier')
    ts(2)
    HA, YB, NB = T0, T0 + 16, 6
    DF = T0 + 60
    fr = [(ks, qt) for qt in range(2) for ks in range(20)]
    rd = lambda k: f'ds_read_b128 {v(YB + 4*(k % NB), 4)}, {v(PY)} offset:{L_Y + fr[k][1]*16*YS + fr[k][0]*64}'
    G, GC = T0 + 44, T0 + 52
    c1 = -2 * 1.4426950408889634 * 0.7978845608028654
    def gelu(qt):
        h = HA + 8*qt
        o = [f'v_mul_f32 {v(G+i)}, {v(h+i)}, {v(h+i)}' for i in range(8)]
        o += [f'v_fmamk_f32 {v(G+i)}, {v(G+i)}, {f2u(c1 * 0.044715)}, {v(GC)}' for i in range(8)]
        o += [f'v_mul_f32 {v(G+i)}, {v(G+i)}, {v(h+i)}' for i in range(8)]
        o += [f'v_exp_f32 {v(G+i)}, {v(G+i)}' for i in range(8)]
        o += [f'v_add_f32 {v(G+i)}, 1.0, {v(G+i)}' for i in range(8)]
        o += [f'v_rcp_f32 {v(G+i)}, {v(G+i)}' for i in range(8)]
        o += [f'v_mul_f32 {v(G+i)}, {v(G+i)}, {v(h+i)}' for i in range(8)]
        o += [f'v_cvt_pk_bf16_f32 {v(h+i)}, {v(G+2*i)}, {v(G+2*i+1)}' for i in range(4)]
        return o + [f'ds_write_b128 {v(PH)}, {v(h,4)} offset:{L_H + 4096*qt}']
    for k in range(NB - 1): S(rd(k))
    S(f'v_mov_b32 {v(GC)}, {f2u(c1)}')
    q = []
    for k, (ks, qt) in enumerate(fr):
        if k == 20: q = gelu(0); S(f'buffer_load_dword {v(DF)}, {v(P4)}, {SRD}, {s(sFT)} offen offset:{F_D} sc1')
        for t in range(2):
            d = HA + 8*qt + 4*t
            S(MF32(d, W1(ks, t), YB + 4*(k % NB), d if ks else B1 + 4*t))
            if t == 0 and k + NB - 1 < 40: S(rd(k + NB - 1))
            if k > 20:
                pop = 1 if q and q[0].startswith(('v_exp', 'v_rcp')) else 2
                for _ in range(pop):
                    if q: S(q.pop(0))
    for x in q + gelu(1): S(x)
    okd = lab('okd')
    S(f'v_cmp_gt_u32 vcc, {s(sU)}, {v(DF)}\ns_cbranch_vccz {okd}')
    wait_flags(S, DF, 1, P4, s(sFT), s(sU), off=F_D)
    S.label(okd)
    S.force_wait(lg=0); S('s_barrier')
    for i in range(8): S(f'ds_read_b128 {v(T0 + 4*i, 4)}, {v(P16)} offset:{L_H + 1024*i}')
    ts(3)
    gemm_out(S, 4, W2, None, sc)
    ts(4)
    wave_flag(S, F_B, sc)
    S.wait(vm=0)
    S.label(nomlp)
    S('s_nop 7')
    wait_flags(S, T0, 1, P4, s(sFT), s(sU), lanes=56, off=F_B)
    ts(5)
    reduce_rows(S, L_R2)
    ts(6)
    nw = lab('p8')
    S(f's_cmp_lg_u32 {s(sQT)}, 0\ns_cbranch_scc1 {nw}')
    R, N, T = T0, T0 + 20, T0 + 30
    row_sum(S, R, L_R2)
    S(f's_lshl_b32 {s(sT0)}, {s(sSEG)}, 5\ns_add_u32 {s(sT0)}, {s(sT0)}, {s(sTOK)}\ns_mul_i32 {s(sT0)}, {s(sT0)}, 1280')
    for i in range(5):
        unpack(S, T, T + 1, MODV + 5 + i); unpack(S, T + 2, T + 3, MODV + i); unpack(S, T + 4, T + 5, XR + i)
        S(f'''v_add_f32 {v(T)}, {v(T)}, {v(R+2*i)}
        v_add_f32 {v(T+1)}, {v(T+1)}, {v(R+2*i+1)}
        v_fmac_f32 {v(T+4)}, {v(T)}, {v(T+2)}
        v_fmac_f32 {v(T+5)}, {v(T+1)}, {v(T+3)}
        v_cvt_pk_bf16_f32 {v(N+i)}, {v(T+4)}, {v(T+5)}
        buffer_store_dword {v(N+i)}, {v(P4)}, {s(XD,4)}, {s(sT0)} offen offset:{256*i}''')
    S.label(nw)
    ts(7)

def stage2(S, sc, diag):
    consts(S, 2)
    now = lab('now')
    S(f's_cmp_ge_u32 {s(sA)}, 14\ns_cbranch_scc1 {now}')
    make_srd(S, WD, 'w1', 640*1728*2)
    AD, t = T0, T0 + 1
    S(f'''
    v_lshrrev_b32 {v(AD)}, 2, v0
    v_mul_u32_u24 {v(AD)}, 3456, {v(AD)}
    v_and_b32 {v(t)}, 3, v0
    v_lshl_add_u32 {v(AD)}, {v(t)}, 4, {v(AD)}
    s_lshl_b32 {s(sT1)}, {s(sA)}, 8
    s_lshl_b32 {s(sT0)}, {s(sWAVE)}, 6
    s_add_u32 {s(sT1)}, {s(sT1)}, {s(sT0)}
    v_add_u32 {v(AD)}, {s(sT1)}, {v(AD)}
    s_mul_i32 {s(sT2)}, {s(sWAVE)}, 40960
    s_mov_b32 m0, {s(sT2)}
    ''')
    for i in range(40):
        S(f'buffer_load_dwordx4 {v(AD)}, {s(WD,4)}, 0 offen lds')
        if i < 39: S(f'v_add_u32 {v(AD)}, {16*3456}, {v(AD)}\ns_add_u32 m0, m0, 1024')
    make_srd(S, WD, 'b1', 3456)
    S(f'''v_lshrrev_b32 {v(t)}, 4, v0
    v_lshlrev_b32 {v(t)}, 3, {v(t)}
    v_add_u32 {v(t)}, {s(sT1)}, {v(t)}
    buffer_load_dwordx2 {v(T0+4,2)}, {v(t)}, {s(WD,4)}, 0 offen
    buffer_load_dwordx2 {v(T0+6,2)}, {v(t)}, {s(WD,4)}, 0 offen offset:32''')
    for i in range(4): unpack(S, B1 + 2*i, B1 + 2*i + 1, T0 + 4 + i)
    S(f'''v_lshrrev_b32 {v(AD)}, 4, v0
    v_bfe_u32 {v(t)}, v0, 2, 2
    v_lshl_add_u32 {v(AD)}, {v(AD)}, 3, {v(t)}
    v_lshlrev_b32 {v(AD)}, 6, {v(AD)}
    v_and_b32 {v(t)}, 3, v0
    v_lshl_add_u32 {v(AD)}, {v(t)}, 3, {v(AD)}
    v_add_u32 {v(AD)}, {s(sT2)}, {v(AD)}''')
    S.wait(vm=0)
    for ks in range(20):
        for tt in range(2):
            for u in range(2): S(f'ds_read_b64_tr_b16 {r(W1(ks, tt) + 2*u, 2)}, {v(AD)} offset:{ks*2048 + u*256 + tt*32}')
    S.wait(lg=0)
    make_srd(S, WD, 'w2', 1728*1280)
    S(f's_lshl_b32 {s(sT2)}, {s(sA)}, 7')
    load_perm(S, 4, W2, sT2)
    S.fence(); S.label(now)
    make_srd(S, WD, 'b2', 1280)
    for i in range(5): S(f'buffer_load_dword {v(MODV + 5 + i)}, {v(P4)}, {s(WD,4)}, 0 offen offset:{256*i}')
    load_mod(S, (5,))
    make_srd(S, XD, 'out', 2048*1280)
    if diag: tstamp(S, 5, tmp=188)
    S.wait(vm=0); S('s_barrier')
    L = lab('unit'); S.fence(); S.label(L)
    unit2(S, sc, diag == 1)
    S(f's_add_u32 {s(sU)}, {s(sU)}, 1\ns_xor_b32 {s(sY)}, {s(sY)}, 0x20000\ns_add_u32 {s(sSEG)}, {s(sSEG)}, {NPOST}\ns_cmp_lt_u32 {s(sSEG)}, 64\ns_cbranch_scc1 {L}')
    S.force_wait(vm=0); S('s_endpgm')

def text(sc='', diag=False, cut=False):
    import pre
    S = Stream()
    S(f's_sub_u32 {s(pre.sWI)}, {s(sTEAM)}, {8 - NPOST}\ns_lshl_b32 {s(pre.sWI)}, {s(pre.sWI)}, 5\ns_add_u32 s24, {s(sMEM)}, 24\ns_and_b32 s24, s24, 31\ns_add_u32 {s(pre.sWI)}, {s(pre.sWI)}, s24')
    pre.front(S, diag); S.fence()
    get_near(S, 4, sNEAR)
    if cut: S('s_endpgm')
    if OPT['postwait']:
        S(f's_lshl_b32 {s(sT0)}, {s(sMEM)}, 7\nv_mov_b32 v5, 0')
        wait_flags(S, 4, 1, 5, s(sT0), OPT['postwait'], lanes=1, off=FL_KV)
    L2 = lab('st2')
    S(f's_cmp_ge_u32 {s(sMEM)}, 16\ns_cbranch_scc1 {L2}')
    stage1(S, sc, diag)
    S.label(L2); S.fence()
    stage2(S, sc, diag)
    return S.text()
```

```python
from common import *
sWI, sT0, sT1, sT2 = 16, 17, 18, 19
sNEAR, sKMB = 55, 56
A0, A1 = 8, 20

def mod_phase(S, diag=False):
    skip = lab('nomod')
    S(f's_cmp_ge_u32 {s(sWI)}, 120\ns_cbranch_scc1 {skip}')
    make_srd(S, A0, 'wmod', 640*3840*2); make_srd(S, A1, 'c', 1280)
    W, C, ACC, T = 16, 56, 68, 76
    S(f'''
    v_lshrrev_b32 v2, 2, v0
    v_and_b32 v3, 3, v0
    v_mul_u32_u24 v4, 7680, v2
    v_lshl_add_u32 v4, v3, 4, v4
    v_lshlrev_b32 v5, 1, v2
    s_mul_i32 {s(sT0)}, {s(sWAVE)}, {160*7680}
    s_lshl_b32 {s(sT1)}, {s(sWI)}, 6
    s_add_u32 {s(sT0)}, {s(sT0)}, {s(sT1)}
    s_mul_i32 {s(sT1)}, {s(sWAVE)}, 320
    ''')
    for i in range(10): S(f'buffer_load_ushort {v(C+i)}, v5, {s(A1,4)}, {s(sT1)} offen offset:{32*i}')
    for i in range(10):
        S(f'buffer_load_dwordx4 {v(W+4*i,4)}, v4, {s(A0,4)}, {s(sT0)} offen')
        if i < 9: S(f's_add_u32 {s(sT0)}, {s(sT0)}, {16*7680}')
    S(f'buffer_load_dword v14, off, {s(DBG,4)}, 0 offset:{DBG_INIT} sc1')
    for i in range(10):
        c = C + i
        S(f'''v_lshlrev_b32 {v(c)}, 16, {v(c)}
        v_mul_f32 {v(T)}, {LOG2E | 0x80000000}, {v(c)}
        v_exp_f32 {v(T)}, {v(T)}
        v_add_f32 {v(T)}, 1.0, {v(T)}
        v_rcp_f32 {v(T)}, {v(T)}
        v_mul_f32 {v(c)}, {v(c)}, {v(T)}
        v_cvt_pk_bf16_f32 {v(c)}, {v(c)}, {v(c)}
        v_lshlrev_b32 {v(c)}, 16, {v(c)}''')
    for i in range(10):
        for d in range(4):
            unpack(S, T, T + 1, W + 4*i + d)
            for b in range(2):
                if i == 0: S(f'v_mul_f32 {v(ACC+2*d+b)}, {v(C)}, {v(T+b)}')
                else: S(f'v_fmac_f32 {v(ACC+2*d+b)}, {v(C+i)}, {v(T+b)}')
    S(f'''
    v_lshlrev_b32 v2, 5, v0
    s_lshl_b32 {s(sT0)}, {s(sWAVE)}, 11
    v_add_u32 v2, {s(sT0)}, v2
    ds_write_b128 v2, {v(ACC,4)}
    ds_write_b128 v2, {v(ACC+4,4)} offset:16
    ''')
    ok = lab('ini')
    S(f'v_cmp_gt_u32 vcc, 2, v14\ns_cbranch_vccz {ok}')
    wait_init(S, 14)
    S.label(ok)
    if diag: tstamp(S, 6)
    S.force_wait(lg=0); S('s_barrier')
    nw = lab('modw')
    S(f's_cmp_lg_u32 {s(sWAVE)}, 0\ns_cbranch_scc1 {nw}')
    S('v_lshlrev_b32 v2, 2, v0')
    for i in range(32): S(f'ds_read_b32 {v(W+i)}, v2 offset:{256*i}')
    for i in range(1, 32): S(f'v_add_f32 {v(W)}, {v(W)}, {v(W+i)}')
    S(f'''
    v_mov_b32 {v(T)}, {v(W)}
    v_permlane32_swap_b32 {v(W)}, {v(T)}
    v_add_f32 {v(W)}, {v(W)}, {v(T)}
    v_cvt_pk_bf16_f32 {v(W)}, {v(W)}, {v(W)}
    v_lshlrev_b32 {v(W)}, 16, {v(W)}
    s_sub_u32 {s(sT0)}, {s(sWI)}, 20
    s_sub_u32 {s(sT1)}, {s(sWI)}, 80
    s_min_u32 {s(sT0)}, {s(sT0)}, {s(sT1)}
    s_cmp_lt_u32 {s(sT0)}, 20
    s_cselect_b32 {s(sT0)}, 1.0, 0
    v_add_f32 {v(W)}, {s(sT0)}, {v(W)}
    v_cvt_pk_bf16_f32 {v(W)}, {v(W)}, {v(W)}
    v_and_b32 v2, 31, v0
    v_lshlrev_b32 v2, 1, v2
    s_lshl_b32 {s(sT0)}, {s(sWI)}, 6
    s_add_u32 {s(sT0)}, {s(sT0)}, {OFF_MOD}
    buffer_store_short {v(W)}, v2, {SRD}, {s(sT0)} offen sc1
    ''')
    if diag: tstamp(S, 7)
    S(f's_lshl_b32 {s(sT0)}, {s(sWI)}, 7\ns_add_u32 {s(sT0)}, {s(sT0)}, {FL_MOD}')
    S.wait(vm=0); set_flag(S, T, s(sT0), 1)
    S(f's_branch {nw}')
    S.label(skip)
    np_ = lab('np')
    S(f's_cmp_lg_u32 {s(sWAVE)}, 0\ns_cbranch_scc1 {np_}')
    probe_near(S, 14, sMEM)
    if diag: tstamp(S, 6)
    S.label(np_)
    wait_init(S, 14)
    S.label(nw)

XR, F, MA, MB_ = 80, 100, 140, 160
def ln_load(S):
    make_srd(S, A0, 'x', 2048*1280)
    S(f'''
    s_sub_u32 {s(sT2)}, {32*NPOST - 1}, {s(sWI)}
    v_and_b32 v2, 3, v0
    v_lshrrev_b32 v3, 2, v0
    v_lshlrev_b32 v12, 4, v3
    v_mul_u32_u24 v4, 1280, v2
    v_add_u32 v4, v4, v12
    v_lshlrev_b32 v13, 8, v3
    v_lshl_add_u32 v13, v2, 4, v13
    s_lshl_b32 {s(sT0)}, {s(sT2)}, 2
    s_add_u32 {s(sT0)}, {s(sT0)}, {s(sWAVE)}
    s_mul_i32 {s(sT0)}, {s(sT0)}, {4*1280}
    ''')
    for i in range(5): S(f'buffer_load_dwordx4 {v(XR+4*i,4)}, v4, {s(A0,4)}, {s(sT0)} offen offset:{256*i}')

def ln_phase(S, diag=False):
    T = 8
    if OPT.get('c4'):
        S(f'v_mov_b64 v[4:5], -1\nv_mov_b64 v[6:7], -1\nv_lshlrev_b32 v2, 4, v0\ns_lshl_b32 {s(sT0)}, {s(sWI)}, 2\ns_add_u32 {s(sT0)}, {s(sT0)}, {s(sWAVE)}\ns_lshl_b32 {s(sT0)}, {s(sT0)}, 11\ns_add_u32 {s(sT0)}, {s(sT0)}, {C2_V}')
        for i in range(2): S(f'buffer_store_dwordx4 v[4:7], v2, {SRD}, {s(sT0)} offen offset:{1024*i} sc1')
    def allsum():
        S(f'v_add_f32 {v(T)}, {v(T)}, {v(T+1)}\nv_add_f32_dpp {v(T)}, {v(T)}, {v(T)} row_ror:4 row_mask:0xf bank_mask:0xf')
        xsum(S, T, T + 1, row8=True)
    for i in range(20): unpack(S, F + 2*i, F + 2*i + 1, XR + i)
    S(f'v_add_f32 {v(T)}, {v(F)}, {v(F+1)}\nv_add_f32 {v(T+1)}, {v(F+2)}, {v(F+3)}')
    for i in range(4, 40): S(f'v_add_f32 {v(T+(i&1))}, {v(T+(i&1))}, {v(F+i)}')
    allsum()
    S(f'v_mul_f32 {v(T)}, {f2u(1/640)}, {v(T)}')
    for i in range(40): S(f'v_sub_f32 {v(F+i)}, {v(F+i)}, {v(T)}')
    S(f'v_mul_f32 {v(T)}, {v(F)}, {v(F)}\nv_mul_f32 {v(T+1)}, {v(F+1)}, {v(F+1)}')
    for i in range(2, 40): S(f'v_fmac_f32 {v(T+(i&1))}, {v(F+i)}, {v(F+i)}')
    allsum()
    S(f'v_mov_b32 {v(T+1)}, {f2u(1e-5)}\nv_fmac_f32 {v(T+1)}, {f2u(1/640)}, {v(T)}\nv_rsq_f32 {v(T)}, {v(T+1)}')
    for i in range(40): S(f'v_mul_f32 {v(F+i)}, {v(T)}, {v(F+i)}')
    nw = lab('nw')
    S(f's_cmp_lg_u32 {s(sWAVE)}, 0\ns_cbranch_scc1 {nw}\nv_lshlrev_b32 {v(T+3)}, 7, v0\ns_mov_b32 {s(sT0)}, {FL_MOD}')
    wait_flags(S, T + 2, 1, T + 3, s(sT0), 1, lanes=40)
    S.label(nw); S('s_barrier')
    if diag: tstamp(S, 10)
    S(f's_mov_b32 {s(sT0)}, {OFF_MOD}')
    for i in range(5):
        S(f'buffer_load_dwordx4 {v(MA+4*i,4)}, v12, {SRD}, {s(sT0)} offen offset:{256*i} sc1')
        S(f'buffer_load_dwordx4 {v(MB_+4*i,4)}, v12, {SRD}, {s(sT0)} offen offset:{1280 + 256*i} sc1')
    S(f'''
    s_mul_i32 {s(sT0)}, {s(sT2)}, 20480
    s_lshl_b32 {s(sT1)}, {s(sWAVE)}, 6
    s_add_u32 {s(sT0)}, {s(sT0)}, {s(sT1)}
    s_add_u32 {s(sT0)}, {s(sT0)}, {OFF_H}
    ''')
    for i in range(5):
        for d in range(4):
            k = 4*i + d
            unpack(S, T, T + 1, MA + k); unpack(S, T + 2, T + 3, MB_ + k)
            S(f'v_fmac_f32 {v(T)}, {v(F+2*k)}, {v(T+2)}\nv_fmac_f32 {v(T+1)}, {v(F+2*k+1)}, {v(T+3)}\nv_cvt_pk_bf16_f32 {v(XR+k)}, {v(T)}, {v(T+1)}')
        S(f'buffer_store_dwordx4 {v(XR+4*i,4)}, v13, {SRD}, {s(sT0)} offen sc1')
        S(f's_add_u32 {s(sT0)}, {s(sT0)}, 4096')
    if diag: tstamp(S, 11)
    S.wait(vm=0); S('s_barrier')
    nw = lab('nw')
    S(f's_cmp_lg_u32 {s(sWAVE)}, 0\ns_cbranch_scc1 {nw}\ns_lshl_b32 {s(sT0)}, {s(sT2)}, 7\ns_add_u32 {s(sT0)}, {s(sT0)}, {FL_H}')
    set_flag(S, T, s(sT0), 1)
    S.label(nw)

def front(S, diag):
    ln_load(S)
    st = S.state(); mod_phase(S, diag); S.vm = [(set().union(*[e[0] for e in st[0]]), None), (set(), None)]; S.lg = []
    if diag: tstamp(S, 1)
    ln_phase(S, diag)
    if diag: tstamp(S, 2)
```

```python
from common import *
WD = 8
sCOL, sOUT, sOINC, sH, sHINC, sFL, sCNT, sN, sT0, sT1, sBUF, sCS, sMODE, sOP = range(16, 30)
sXM, sXN = 30, 32
P16, PA, PTR = 1, 2, 3
AB, ACC, PK = 8, 24, 56
def WREG(f): return 256 + 4*f if f < 64 else 192 + 4*(f - 64)

def params(S):
    isq, done = lab('isq'), lab('prm')
    S(f'''
    s_load_dwordx4 s[36:39], s[0:1], {ARG['Wq']}
    s_load_dwordx2 s[40:41], s[0:1], {ARG['Wv']}
    s_sub_u32 {s(sT0)}, {s(sTEAM)}, 2
    s_and_b32 {s(sT1)}, {s(sWAVE)}, 1
    s_waitcnt lgkmcnt(0)
    s_mov_b32 {s(WD+2)}, {640*4096*2}
    s_mov_b32 {s(WD+3)}, 0x20000
    s_cmp_ge_u32 {s(sMEM)}, 16
    s_cbranch_scc1 {isq}
    s_lshl_b32 {s(sT0)}, {s(sT0)}, 4
    s_add_u32 {s(sT0)}, {s(sT0)}, {s(sMEM)}
    s_lshr_b32 {s(sMODE)}, {s(sWAVE)}, 1
    s_cmp_eq_u32 {s(sMODE)}, 0
    s_cselect_b64 {s(WD,2)}, s[38:39], s[40:41]
    s_cselect_b32 {s(sOUT)}, 10, 12
    s_lshl_b32 {s(sOUT)}, {s(sT1)}, {s(sOUT)}
    s_lshl_b32 {s(sCOL)}, {s(sMODE)}, 14
    s_add_u32 {s(sOUT)}, {s(sOUT)}, {s(sCOL)}
    s_lshl_b32 {s(sCOL)}, {s(sT0)}, 15
    s_add_u32 {s(sOUT)}, {s(sOUT)}, {s(sCOL)}
    s_add_u32 {s(sOUT)}, {s(sOUT)}, {OFF_KV + 0x2000}
    s_lshl_b32 {s(sCOL)}, {s(sT0)}, 8
    s_lshl_b32 {s(sT1)}, {s(sT1)}, 7
    s_add_u32 {s(sCOL)}, {s(sCOL)}, {s(sT1)}
    s_lshl_b32 {s(sFL)}, {s(sT0)}, 7
    s_lshl_b32 {s(sT0)}, {s(sWAVE)}, 4
    s_add_u32 {s(sFL)}, {s(sFL)}, {s(sT0)}
    s_branch {done}
    {isq}:
    s_mov_b32 {s(sMODE)}, 2
    s_mov_b64 {s(WD,2)}, s[36:37]
    s_lshl_b32 {s(sT0)}, {s(sT0)}, 3
    s_add_u32 {s(sT0)}, {s(sT0)}, {s(sMEM)}
    s_sub_u32 {s(sT0)}, {s(sT0)}, 16
    s_lshl_b32 {s(sT0)}, {s(sT0)}, 1
    s_lshr_b32 {s(sN)}, {s(sWAVE)}, 1
    s_add_u32 {s(sT0)}, {s(sT0)}, {s(sN)}
    s_lshl_b32 {s(sFL)}, {s(sT0)}, 7
    s_lshl_b32 {s(sCOL)}, {s(sT1)}, 4
    s_add_u32 {s(sFL)}, {s(sFL)}, {s(sCOL)}
    s_add_u32 {s(sFL)}, {s(sFL)}, 64
    s_lshl_b32 {s(sOUT)}, {s(sT0)}, 15
    s_lshl_b32 {s(sCOL)}, {s(sT1)}, 11
    s_add_u32 {s(sOUT)}, {s(sOUT)}, {s(sCOL)}
    s_add_u32 {s(sOUT)}, {s(sOUT)}, {OFF_KV}
    s_lshl_b32 {s(sCOL)}, {s(sT0)}, 8
    s_lshl_b32 {s(sT1)}, {s(sT1)}, 7
    s_add_u32 {s(sCOL)}, {s(sCOL)}, {s(sT1)}
    {done}:
    s_add_u32 {s(sFL)}, {s(sFL)}, {FL_KV}
    s_mov_b32 {s(sH)}, {OFF_H}
    s_mov_b32 {s(sHINC)}, 40960
    s_mov_b32 {s(sN)}, 64
    s_mul_i32 {s(sT0)}, {s(sWAVE)}, 10240
    s_add_u32 {s(sH)}, {s(sH)}, {s(sT0)}
    s_mov_b32 {s(sCS)}, {QSCALE}
    s_mov_b32 {s(sXM)}, 0xcccccccc
    s_mov_b32 {s(sXM+1)}, 0xcccccccc
    s_mov_b32 {s(sXN)}, 0x33333333
    s_mov_b32 {s(sXN+1)}, 0x33333333
    ''')

def load_w(S):
    S(f'''
    v_lshlrev_b32 {v(P16)}, 4, v0
    v_lshrrev_b32 v4, 3, v0
    v_and_b32 v5, 7, v0
    v_lshlrev_b32 v4, 13, v4
    v_lshl_add_u32 v4, v5, 4, v4
    v_lshrrev_b32 v5, 4, v0
    v_bfe_u32 v6, v0, 2, 2
    v_lshl_add_u32 v5, v5, 3, v6
    v_lshlrev_b32 v5, 7, v5
    v_and_b32 v6, 3, v0
    v_lshl_add_u32 v5, v6, 3, v5
    s_mul_i32 {s(sBUF)}, {s(sWAVE)}, 40960
    v_add_u32 {v(PTR)}, {s(sBUF)}, v5
    ''')
    def issue(ks):
        S(f's_add_u32 m0, {s(sBUF)}, {(ks % 10)*4096}')
        for i in range(4):
            S(f's_add_u32 {s(sT0)}, {s(sCOL)}, {(32*ks + 8*i)*8192 - i*1024}')
            S(f'buffer_load_dwordx4 v4, {s(WD,4)}, {s(sT0)} offen offset:{i*1024} lds', tag=f'w{ks}')
    for ks in range(10): issue(ks)
    for ks in range(20):
        S.wait(tag=f'w{ks}')
        for t in range(4):
            for u in range(2):
                S(f'ds_read_b64_tr_b16 {r(WREG(4*ks + t) + 2*u, 2)}, {v(PTR)} offset:{(ks % 10)*4096 + u*512 + t*32}')
        if ks < 10:
            S.wait(lg=0); issue(ks + 10)
    S.wait(lg=0)

def dma_h(S):
    out = []
    for i in range(10):
        pre = ''
        if i % 4 == 0: pre = f's_add_u32 m0, {s(sBUF)}, {i*1024}\ns_add_u32 {s(sT1)}, {s(sH)}, {i*1024}\n'
        out.append((pre + f'buffer_load_dwordx4 {v(P16)}, {SRD}, {s(sT1)} offen offset:{(i % 4)*1024} sc1 lds', 'h'))
    return out

PN = 6
sOQ, sRD = 34, 35
def epi(mode, qt, so):
    cv = lambda d, x: [f'v_cvt_pk_bf16_f32 {v(d)}, {v(x)}, {v(x+1)}', f'v_cvt_pk_bf16_f32 {v(d+1)}, {v(x+2)}, {v(x+3)}']
    st = lambda x, off: [(f'buffer_store_dwordx4 {v(x,4)}, {v(P16)}, {SRD}, {s(so)} offen offset:{off} sc1', 'o')]
    A = ACC + 16*qt; o = []
    if mode == 1:
        for t in range(4): o += cv(PK + 4*t + 2*qt, A + 4*t) + (st(PK + 4*t, t*1024) if qt else [])
        return o
    if mode == 0: o += [f'v_mul_f32 {v(A + i)}, {s(sCS)}, {v(A + i)}' for i in range(16)]
    G = PK + 16 if mode == 0 else PK + 8*qt
    for eh in range(2):
        o += cv(G + 4*eh, A + 4*eh) + cv(G + 4*eh + 2, A + 4*(2 + eh))
        if mode == 2: o += st(G + 4*eh, eh*1024)
    if mode == 0:
        for x in range(2):
            d = [f'v_cndmask_b32_dpp {v(PK + 8*qt + 4*x + i)}, {v(G + 4*(1-x) + i)}, {v(G + 4*x + i)}, vcc quad_perm:[2,3,0,1] row_mask:0xf bank_mask:0xf' for i in range(4)]
            o += [f's_mov_b64 vcc, {s((sXN, sXM)[x], 2)}\n' + d[0]] + d[1:] + st(PK + 8*qt + 4*x, x*2048)
    return o

rot = lambda x, base: f's_add_u32 {s(x)}, {s(x)}, 40960\ns_cmp_ge_u32 {s(x)}, 122880\ns_cselect_b32 {s(x)}, {base}, {s(x)}'
fr = [(ks, qt) for qt in range(2) for ks in range(20)]
def rd(k):
    a_, k0 = (PA, k) if k < 40 else (PN, k - 40)
    return f'ds_read_b128 {v(AB + 4*(k % 4), 4)}, {v(a_)} offset:{fr[k0][1]*20480 + fr[k0][0]*1024}'

def body(S, mode, L):
    S.label(L)
    q = []; dm = []
    for k, (ks, qt) in enumerate(fr):
        if ks == 0: q = epi(mode, 1 - qt, sOP if qt else sOQ)
        for t in range(4):
            d = ACC + 16*qt + 4*t; hh = AB + 4*(k % 4); ww = WREG(4*ks + t)
            S(MF32(d, hh, ww, d if ks else None) if mode == 1 else MF32(d, ww, hh, d if ks else None))
            g = []
            if t == 0: g.append(rd(k + 3))
            elif q and (ks or t == 3): g.append([q.pop(0) for _ in range(min(len(q), 1 if dm and t == 2 else 2))])
            if t == 2 and dm: g.append([dm.pop(0)])
            S.gap(g)
            if t == 2 and k == 16: S(f'{swz(sOP, sOUT)}\ns_add_u32 {s(sOUT)}, {s(sOUT)}, {32*KVB}')
            if t == 2 and k == 19:
                assert not q
                S.wait(tag='o'); set_flag(S, 4, s(sFL), s(sCNT))
            if t == 2 and k == 26:
                S.wait(tag='h'); S('s_barrier')
                S(f'{rot(sBUF, s(sHINC))}\ns_add_u32 {s(sH)}, {s(sH)}, 40960'); dm = dma_h(S)
            if t == 2 and k == 38: S(f's_add_u32 {s(sOQ)}, {s(sOP)}, {0 if mode == 1 else 4096}\ns_add_u32 {s(sCNT)}, {s(sCNT)}, 1\n{rot(sRD, 0)}')
            if t == 1 and k == 39: S(f'v_mov_b32 {v(PA)}, {v(PN)}\nv_add_u32 {v(PN)}, {s(sRD)}, {v(P16)}')
            if t == 2 and k == 39: S(f's_cmp_lt_u32 {s(sCNT)}, 64')
    assert not q and not dm
    S(f's_cbranch_scc1 {L}')

def text(diag=False):
    S = Stream()
    go = lab('go')
    S(f'''s_add_u32 {s(sMEM)}, {s(sMEM)}, 24
    s_and_b32 {s(sMEM)}, {s(sMEM)}, 31
    s_cmp_lt_u32 {s(sMEM)}, 24
    s_cbranch_scc1 {go}
    ''')
    service(S, diag)
    S.label(go); S.vm = []; S.lg = []
    params(S)
    if OPT['qwait']:
        nq = lab('nq')
        S(f's_cmp_lg_u32 {s(sMODE)}, 2\ns_cbranch_scc1 {nq}')
        wait_init(S, 4)
        if OPT['qwait'] == 1: S(f's_lshl_b32 {s(sT0)}, {s(sMEM)}, 7\ns_add_u32 {s(sT0)}, {s(sT0)}, {FL_H}')
        else: S(f's_andn2_b32 {s(sT0)}, {s(sFL)}, 127')
        wait_flags(S, 4, 1, 5, s(sT0), 1, lanes=1)
        S.label(nq)
    load_w(S)
    if diag: tstamp(S, 1)
    wait_init(S, 4); get_near(S, 4, sT0); S(f's_xor_b32 {s(sOUT)}, {s(sOUT)}, {s(sT0)}')
    nw = lab('nw')
    S(f's_cmp_gt_u32 {s(sWAVE)}, 1\ns_cbranch_scc1 {nw}\ns_lshl_b32 {s(sT0)}, {s(sWAVE)}, 13\ns_add_u32 {s(sT0)}, {s(sT0)}, {FL_H}\nv_lshlrev_b32 v5, 7, v0')
    wait_flags(S, 4, 1, 5, s(sT0), 1)
    S.label(nw)
    if diag: tstamp(S, 2)
    S('s_barrier')
    S(f's_mul_i32 {s(sBUF)}, {s(sWAVE)}, 10240\ns_mov_b32 {s(sHINC)}, {s(sBUF)}\nv_mov_b32 {v(PA)}, {v(P16)}\ns_mov_b32 {s(sCNT)}, 0')
    for x in dma_h(S): S(x[0], tag='h0')
    S(f's_add_u32 {s(sBUF)}, {s(sBUF)}, 40960\ns_add_u32 {s(sH)}, {s(sH)}, 40960')
    for x in dma_h(S): S(*x)
    S(f's_mov_b32 {s(sRD)}, 40960\nv_add_u32 {v(PN)}, {s(sRD)}, {v(P16)}\ns_lshl_b32 {s(sOQ)}, {s(sWAVE)}, 12\ns_add_u32 {s(sOQ)}, {s(sOQ)}, {OFF_JUNK}')
    S.wait(tag='h0'); S('s_barrier')
    for k in range(3): S(rd(k))
    S.wait(lg=0)
    Ls = [lab('pj') for _ in range(3)]; end = lab('pje')
    S(f's_cmp_eq_u32 {s(sMODE)}, 1\ns_cbranch_scc1 {Ls[1]}\ns_cmp_eq_u32 {s(sMODE)}, 2\ns_cbranch_scc1 {Ls[2]}')
    t = S.text()
    for m in range(3):
        S1 = Stream(); body(S1, m, Ls[m])
        S2 = Stream(S1.state()); body(S2, m, Ls[m])
        assert S1.vm == S2.vm, (S1.vm, S2.vm)
        S2.gap([epi(m, 1, sOQ)])
        S2(f's_branch {end}')
        t += S2.text()
    E = Stream(); E.label(end); E.force_wait(vm=0)
    set_flag(E, 4, s(sFL), s(sCNT)); E.force_wait(vm=0); E('s_endpgm')
    return t + E.text()
```

```python
import re, copy

REG_RE = re.compile(r'^(-|\|)?(abs\()?([vas])(\d+|\[(\d+):(\d+)\])\)?\|?$')
def regs_of(op):
    op = op.strip()
    if op == 'vcc': return {('s', 106), ('s', 107)}
    if op == 'exec': return {('s', 126), ('s', 127)}
    if op == 'm0': return {('s', 124)}
    m = REG_RE.match(op)
    if not m: return set()
    k = m.group(3)
    if m.group(5) is not None: lo, hi = int(m.group(5)), int(m.group(6))
    else: lo = hi = int(m.group(4))
    return {(k, i) for i in range(lo, hi + 1)}

TRANS = ('v_exp_', 'v_log_', 'v_rcp_', 'v_rsq_', 'v_sqrt_', 'v_sin_', 'v_cos_')
def passes(mn):
    if '32x32' in mn: return 8
    return 4

class I:
    def __init__(self, text):
        self.text = text
        t = text.split(';')[0].strip()
        sp = t.split(None, 1)
        self.mn = mn = sp[0]
        rest = sp[1] if len(sp) > 1 else ''
        ops = [o.strip() for o in rest.split(',')] if rest else []
        mods = ''
        if ops:
            last = ops[-1].split()
            ops[-1] = last[0]; mods = ' '.join(last[1:])
        self.ops, self.mods = ops, mods
        R = [regs_of(o) for o in ops]
        U = lambda l: set().union(*l) if l else set()
        self.defs, self.uses = set(), set()
        self.cls = 'other'; self.srcc = set(); self.ab = set(); self.data = set()
        self.states = 1
        if mn.startswith('v_mfma'):
            self.cls = 'mfma'; self.defs = R[0]; self.ab = R[1] | R[2]; self.srcc = R[3]; self.uses = self.ab | self.srcc
        elif mn.startswith('v_smfmac'):
            self.cls = 'mfma'; self.defs = R[0]; self.ab = R[1] | R[2] | R[3]; self.srcc = R[0]; self.uses = self.ab | self.srcc
        elif mn.startswith('v_'):
            self.cls = 'valu'
            self.defs = set(R[0]); self.uses = U(R[1:])
            if 'swap' in mn: self.defs = R[0] | R[1]; self.uses = R[0] | R[1]
            if mn.startswith(('v_fmac', 'v_pk_fmac', 'v_writelane', 'v_dot2c')) or 'dpp' in mn or 'row_' in mods: self.uses |= R[0]
            if mn.startswith(('v_add_co', 'v_sub_co', 'v_addc_co', 'v_div_scale')): self.defs |= R[1]; self.uses = U(R[2:])
            if mn.startswith('v_cndmask') and len(ops) == 3: self.uses |= regs_of('vcc')
        elif mn.startswith('ds_'):
            self.cls = 'ds'
            if mn.startswith(('ds_read', 'ds_bpermute', 'ds_permute', 'ds_swizzle')) or '_rtn' in mn: self.defs = R[0]; self.uses = U(R[1:])
            else: self.uses = U(R)
        elif mn.startswith(('buffer_', 'global_')):
            self.cls = 'vm'
            if mn in ('buffer_wbl2', 'buffer_inv'): pass
            elif 'load' in mn:
                if ' lds' in ' ' + mods: self.uses = U(R) | regs_of('m0')
                else: self.defs = R[0]; self.uses = U(R[1:])
            elif 'atomic' in mn:
                self.uses = U(R)
                if 'sc0' in mods: self.defs = R[0]
            else:
                self.uses = U(R)
                if 'x3' in mn or 'x4' in mn: self.data = R[0] if mn.startswith('buffer') else R[1]
        elif mn == 's_nop':
            self.cls = 'nop'; self.states = int(ops[0], 0) + 1
        elif mn.startswith('s_'):
            self.cls = 'salu'
            if mn.startswith(('s_cmp', 's_cbranch', 's_branch', 's_waitcnt', 's_barrier', 's_endpgm', 's_setprio', 's_bitcmp')): self.uses = U(R)
            else:
                self.defs = R[0] if R else set(); self.uses = U(R[1:])
                if 'saveexec' in mn: self.defs = self.defs | regs_of('exec')
        self.trans = mn.startswith(TRANS)
        self.dpp = 'dpp' in mn or 'row_' in mods or 'quad_perm' in mods
        self.vdefs = {x for x in self.defs if x[0] != 's'}
        self.sdefs = {x for x in self.defs if x[0] == 's'}

def need(p, c):
    n = 0
    if p.cls == 'valu':
        if c.cls == 'mfma' and p.vdefs & c.uses: n = max(n, 2)
        if c.cls == 'valu':
            if p.trans and not c.trans and p.vdefs & c.uses: n = max(n, 1)
            if (c.dpp or 'permlane' in c.mn) and p.vdefs & c.uses: n = max(n, 2)
            if c.mn.startswith(('v_readlane', 'v_readfirstlane')) and p.vdefs & c.uses: n = max(n, 1)
            if p.sdefs & c.uses: n = max(n, 4 if 'lane' in c.mn else 2)
        if c.cls in ('ds', 'vm') and p.trans and p.vdefs & c.uses: n = max(n, 1)
        if c.cls == 'vm' and p.sdefs & c.uses: n = max(n, 5)
    if p.mn.startswith('v_dot') and p.vdefs & (c.uses | c.defs): n = max(n, 3)
    if p.cls == 'mfma':
        ps = passes(p.mn)
        if c.cls == 'mfma':
            if p.defs & c.ab: n = max(n, ps + 4)
            if p.defs & c.srcc and not (p.defs == c.srcc and p.mn == c.mn): n = max(n, ps + 2)
            if p.defs & c.defs and not (p.defs & c.srcc): n = max(n, ps + 2)
        elif c.cls in ('valu', 'ds', 'vm'):
            if p.defs & (c.uses | c.defs): n = max(n, ps + 4)
            if c.cls == 'valu' and p.srcc & c.defs: n = max(n, ps - 1)
    if p.cls == 'vm' and p.data and p.data & c.defs: n = max(n, 2)
    if p.cls == 'salu' and ('s', 124) in p.defs and c.cls == 'vm' and ('s', 124) in c.uses: n = max(n, 1)
    return n

class Stream:
    def __init__(self, state=None):
        self.out = []
        self.vm, self.lg, self.hist = [], [], []
        if state: self.vm, self.lg, self.hist = copy.deepcopy(state)
        self.nops = 0; self.hoist = True; self.alive = None
    def state(self): return copy.deepcopy((self.vm, self.lg, self.hist))
    def raw(self, s): self.out.append(s)
    def c(self, s): self.out.append('    ; ' + s)
    def label(self, name): self.out.append(name + ':')
    def _push(self, ins):
        self.out.append(ins)
        self.hist.append(ins)
        if len(self.hist) > 24: self.hist.pop(0)
    def _wait(self, nvm=None, nlg=None):
        parts = []
        if nvm is not None and nvm < len(self.vm):
            n = min(nvm, 63); parts.append(f'vmcnt({n})'); self.vm = self.vm[len(self.vm) - n:] if n else []
        if nlg is not None and nlg < len(self.lg):
            n = min(nlg, 15); parts.append(f'lgkmcnt({n})'); self.lg = self.lg[len(self.lg) - n:] if n else []
        if parts: self._push(I('s_waitcnt ' + ' '.join(parts)))
    def wait(self, tag=None, vm=None, lg=None):
        if tag is not None:
            tags = tag if isinstance(tag, (list, tuple, set)) else [tag]
            for q, nm in ((self.vm, 'vm'), (self.lg, 'lg')):
                idx = [i for i, e in enumerate(q) if e[1] in tags]
                if idx:
                    n = len(q) - 1 - idx[-1]
                    if nm == 'vm': vm = n if vm is None else min(vm, n)
                    else: lg = n if lg is None else min(lg, n)
        self._wait(vm, lg)
    def force_wait(self, vm=None, lg=None):
        parts = []
        if vm is not None: parts.append(f'vmcnt({vm})'); self.vm = self.vm[len(self.vm) - vm:] if vm and vm < len(self.vm) else ([] if not vm else self.vm)
        if lg is not None: parts.append(f'lgkmcnt({lg})'); self.lg = self.lg[len(self.lg) - lg:] if lg and lg < len(self.lg) else ([] if not lg else self.lg)
        self._push(I('s_waitcnt ' + ' '.join(parts)))
    def pend(self, queue, regs, tag=None):
        (self.vm if queue == 'vm' else self.lg).append((regs_of(regs), tag))
    def __call__(self, text, tag=None):
        for l in text.strip('\n').split('\n'):
            l = l.strip()
            if not l: continue
            if l.startswith(';'): self.out.append('    ' + l); continue
            if l.endswith(':'): self.out.append(l); continue
            self.emit(l, tag)
        return self
    def emit(self, text, tag=None):
        ins = I(text)
        if ins.mn == 's_waitcnt':
            m = re.search(r'vmcnt\((\d+)\)', text); n = re.search(r'lgkmcnt\((\d+)\)', text)
            self.force_wait(int(m.group(1)) if m else None, int(n.group(1)) if n else None); return
        touched = ins.uses | ins.defs
        if tag == 'junk': touched = set(ins.uses)
        nvm = nlg = None
        for q, nm in ((self.vm, 'vm'), (self.lg, 'lg')):
            idx = [i for i, e in enumerate(q) if e[0] & touched]
            if idx:
                n = len(q) - 1 - idx[-1]
                if nm == 'vm': nvm = n
                else:
                    nlg = n
                    if any(e[1] == '_smem' for e in q): nlg = 0
        if ins.cls == 'mfma' and (nvm is not None or nlg is not None) and self.hoist and self._hoist(nvm, nlg): pass
        else: self._wait(nvm, nlg)
        pad = self._spread(ins)
        if self.alive is not None and pad >= 4:
            k = pad // 2; self._push(I(f's_nop {k-1}')); self._push(I(f'v_mov_b32 v{self.alive}, v{self.alive}')); pad -= k + 1
        while pad > 0:
            k = min(pad, 16); self._push(I(f's_nop {k-1}')); self.nops += k; pad -= k
        self._push(ins)
        if ins.cls == 'vm': self.vm.append((set(ins.defs), tag))
        elif ins.cls == 'ds': self.lg.append((set(ins.defs), tag))
        elif ins.mn.startswith(('s_load', 's_memtime', 's_memrealtime', 's_buffer_load')):
            self.lg.append((set(ins.defs), '_smem')); self.lg.append((set(ins.defs), '_smem'))
    def _hoist(self, nvm, nlg):
        gap = []
        k = len(self.out) - 1
        while k >= 0:
            o = self.out[k]
            if isinstance(o, str):
                if o.endswith(':'): return False
                k -= 1; continue
            if o.cls == 'mfma': break
            if o.mn.startswith(('s_cbranch', 's_branch', 's_barrier', 's_waitcnt')): return False
            gap.append(o); k -= 1
            if len(gap) > 3: return False
        if k < 0 or not gap: return False
        if len(gap) == 1 and gap[0].cls in ('ds', 'vm', 'salu'): return False
        dv = sum(o.cls == 'vm' for o in gap); dl = sum(o.cls == 'ds' for o in gap)
        parts = []
        if nvm is not None:
            if nvm < dv: return False
            parts.append(f'vmcnt({min(nvm - dv, 63)})')
        if nlg is not None:
            if nlg < dl: return False
            parts.append(f'lgkmcnt({min(nlg - dl, 15)})')
        w = I('s_waitcnt ' + ' '.join(parts))
        m = self.out[k]
        self.out.insert(k + 1, w)
        hi = [i for i, h in enumerate(self.hist) if h is m]
        if hi: self.hist.insert(hi[0] + 1, w)
        if nvm is not None: self.vm = self.vm[len(self.vm) - nvm:] if nvm else []
        if nlg is not None: self.lg = self.lg[len(self.lg) - nlg:] if nlg else []
        return True
    def gap(self, items):
        buf = []
        def flush():
            key = lambda it: {'salu': 0, 'nop': 0, 'ds': 1, 'vm': 1}.get(I(it[0].strip().split('\n')[-1].strip()).cls, 2)
            for t, tag in sorted(buf, key=key): self(t, tag)
            buf.clear()
        for it in items:
            if it is None: continue
            if callable(it): flush(); it(self)
            elif isinstance(it, list):
                flush()
                for x in it: self(*x) if isinstance(x, tuple) else self(x)
            else: buf.append(it if isinstance(it, tuple) else (it, None))
        flush()
    def _pad(self, ins):
        dist = 0; pad = 0; who = None
        for k in range(len(self.hist) - 1, -1, -1):
            p = self.hist[k]
            if need(p, ins) - dist > pad: pad = need(p, ins) - dist; who = k
            dist += p.states
            if dist > 20: break
        return pad, who
    def _spread(self, ins):
        while True:
            pad, who = self._pad(ins)
            if pad <= 0: return 0
            placed = False
            for k in range(who, len(self.hist)):
                p = self.hist[k]
                if p.cls != 'mfma': continue
                j = k + 1; occ = 0; ok = True
                while j < len(self.hist) and self.hist[j].cls != 'mfma':
                    if self.hist[j].mn.startswith(('s_cbranch', 's_branch', 's_barrier')): ok = False
                    occ += self.hist[j].states; j += 1
                if not ok: continue
                room = (passes(p.mn) - 1) - occ if j < len(self.hist) else 0
                lead = 0; jj = k + 1
                while jj < j and self.hist[jj].cls in ('salu', 'nop'): lead += self.hist[jj].states; jj += 1
                if jj < j and self.hist[jj].cls == 'valu': room = max(room, (2 if 'smf' in p.mn else 1) - lead)
                if room <= 0: continue
                pos = [i for i in range(len(self.out) - 1, max(-1, len(self.out) - 80), -1) if self.out[i] is p]
                if not pos: continue
                n = min(room, pad); nop = I(f's_nop {n-1}')
                self.out.insert(pos[0] + 1, nop); self.hist.insert(k + 1, nop)
                placed = True; break
            if not placed: return pad
    def fence(self):
        self.force_wait(0, 0)
        self._push(I('s_nop 11'))
    def text(self): return '\n'.join(o if isinstance(o, str) else '    ' + o.text for o in self.out) + '\n'
```

```python
import sys
from common import *
import chain3 as C, proj, post, pre
from asmlib import kernel_file
NAME = 'adaLN_cond__memory_aug_recurrent_mem_tr__mixer_channel_mlp__prompt'
DEF = dict(OPT)
def chain_text(ko, diag, sc1=False, pfx='c', log=False):
    t = ''
    H = Stream()
    H(f's_mov_b32 {s(C.sNST)}, 64')
    for w in range(1, 4): H(f's_cmp_eq_u32 {s(sWAVE)}, {w}\ns_cbranch_scc1 L{pfx}w{w}')
    t += H.text()
    for w in range(4):
        c = C.Chain(w, sc1=sc1, ko=ko, pfx=pfx, stamps='L' if log else '')
        T = Stream(); T.label(f'L{pfx}w{w}')
        c.load_weights(T)
        if diag: tstamp(T, 1)
        c.lane_consts(T)
        C.zero(T, C.M, 4)
        if w == 0: T(f'ds_write_b128 {v(C.P16)}, {v(C.M,4)} offset:{C.L_PM}')
        wait_init(T, 16); wait_init(T, 16, DBG_RING, 12); get_near(T, 16, C.sNEAR); c.setup(T)
        wait_flags(T, C.X, 1, C.P16, s(C.sFLG), 2, lanes=4)
        if diag: tstamp(T, 2, tmp=16); tstamp(T, 4, tmp=16, cyc=True)
        c.enter(T)
        T.fence()
        body, ool = c.loop_text()
        E = Stream(); E.fence()
        if log: E(f's_lshl_b32 s25, s3, 5\ns_add_u32 s25, s25, {s(sMEM)}\ns_lshl_b32 s24, s25, 13\ns_add_u32 s24, s24, {OFF_DIAG + 0x200000 + w*2048}\nv_lshlrev_b32 v3, 1, v0\nbuffer_store_dwordx4 v[248:251], v3, s[4:7], s24 offen\nbuffer_store_dwordx4 v[252:255], v3, s[4:7], s24 offen offset:16')
        if diag: tstamp(E, 3); tstamp(E, 5, cyc=True)
        E('s_endpgm')
        t += T.text() + body + E.text() + ool
    return t

def gen(diag=False, ko='FIsE0B2avn1', cut=False, log=False, **opt):
    OPT.update(DEF); OPT.update(opt)
    S = Stream()
    entry(S)
    if diag: tstamp(S, 0)
    S(f'''
    s_cmp_lt_u32 {s(sTEAM)}, 2
    s_cbranch_scc1 L_chain
    s_cmp_lt_u32 {s(sTEAM)}, {8 - NPOST}
    s_cbranch_scc1 L_proj
    s_branch L_post
    L_end:
    s_endpgm
    ''')
    pj, po = proj.text(diag), post.text(diag=diag, cut=cut)
    if diag:
        E = Stream(); tstamp(E, 3); E('s_endpgm')
        pj = pj.replace('    s_endpgm\n', E.text()); po = po.replace('    s_endpgm\n', E.text())
    txt = S.text() + 'L_proj:\n' + pj + 'L_post:\n' + po + 'L_chain:\n' + chain_text(ko, diag, log=log) + 'L_code_end:\n'
    hdr = ''.join(l for l in open(f'cdna_kernels/{NAME}.s.ref') if l.startswith(';') and '@launch' not in l)
    return kernel_file(NAME + '_kernel', txt, '; @launch grid=(256,1,1) block=(256,1,1) lds=163840', header=hdr)
if __name__ == '__main__':
    open(sys.argv[1] if len(sys.argv) > 1 else f'cdna_kernels/{NAME}.s', 'w').write(gen())
```

```python
from common import *
P16, PL, IDX, PX, PT, PR, PP, PM, P4, Q0, Q1, Q2 = range(12)
FLG = PM
RB, X, VA, Y, M, K, V, KN, ZA, ZB = 12, 16, 32, 40, 48, 56, 64, 72, 80, 88
RES0 = 96
VN = ZA
L_QK, L_PX, L_PM, L_W = 10240, 14336, 15360, 16384
L_O, L_MX = L_QK, 0
NLS = (20, 20, 16, 16)
MEMW, PUBW, FLGW = 3, 1, 1
RED = {2: 0, 0: 1}
WD = 8
sHEAD = sMEM
sSTEP = 14
sPst, sUpoll, sPar, sMin, sMout, sRin, sKN, sKM, sRout, sT0, sT1, sFLG, sQS, sLo, sRng, sNST, sVV, sMbase, sRbase, sNEAR = range(16, 36)
sHALF = 36
sFKM = 100
sKVL, sKML = 98, 99
sMK = 38
sC = 96
sST = 48
def lbase(w): return L_W + sum(NLS[:w]) * 2048
def SMF(acc, A, B, wo=False):
    return f'v_smfmac_f32_16x16x64_bf16 {v(acc,4)}, {v(A,4)}, {r(B,8)}, {v(IDX)}' + (' abid:1' if wo else '')
def zero(S, reg, n):
    for i in range(0, n, 2): S(f'v_mov_b64 {v(reg + i, 2)}, 0')
mov2 = lambda d, a_: f'v_mov_b64 {v(d,2)}, {v(a_,2)}'
z2 = lambda x: f'v_mov_b64 {v(x,2)}, 0'

class Plan:
    def __init__(self, w, early=False):
        self.w = w
        self.tiles = [w, 4 + w] + ([8 + w] if w < 2 else [])
        lo = [w, w ^ 1, w ^ 2, w ^ 3, 4]
        self.co = lo + [5 + c for c in lo]
        six = (('q', 0), ('q', 1), ('k', 0), ('k', 1), ('v', 0), ('v', 1))
        co = self.co
        self.p1 = [(m, c, t) for c in co[:6] for m, t in six] + [(m, c, t) for m in 'qk' for c in co[6:] for t in range(2)]
        if early: self.p1 = self.p1[:32] + self.p1[34:44] + self.p1[32:34] + self.p1[44:]
        self.vv = [('v', c, t) for c in (co[6], co[7], co[8], co[9]) for t in range(2)]
        nt = len(self.tiles)
        self.wo = [('o', T, w) for T in self.tiles] + [('o', T, w ^ j) for T in self.tiles for j in (1, 2, 3)]
        q = {i: (sl, None) for i, sl in enumerate([Y, ZA, ZB, KN])}
        q.update({8: (ZA, (2, 3)), 10: (ZB, (4, 5)), 12: (KN, (6, 7)), 14: (ZA, (8, 9)), 16: (ZB, (10, 11)), 19: (KN, (13, 14)), 21: (ZA, (15, 16)), 24: (M, (18, 19))})
        if w < 2: q.update({26: (ZB, (20, 21)), 28: (KN, (22, 23)), 31: (M, (24, 25)), 41: (M, (35, 36))})
        self.p1_nr = q
        self.vv_nr = {0: (M, (43, 44))}
        self.wo_nr = {0: (K, None), nt: (ZB, None), nt + 5: (V, None)}
        self.loc = {}
        nr = nl = 0
        for lst, tab in ((self.p1, self.p1_nr), (self.vv, self.vv_nr), (self.wo, self.wo_nr)):
            for i, b in enumerate(lst):
                if i in tab: self.loc[b] = ('L', nl); nl += 1
                else: self.loc[b] = ('R', RES0 + 8*nr); nr += 1
        assert nl == NLS[w] and RES0 + 8*nr == 512, (w, nl, nr)
    def fetch(self, b, slot):
        return [f'ds_read_b128 {v(slot + 4*h, 4)}, {v(PL)} offset:{self.loc[b][1]*2048 + h*1024}' for h in range(2)]
    def reg(self, lst, tab, i): return tab[i][0] if i in tab else self.loc[lst[i]][1]

class Chain:
    def __init__(self, w, sc1=False, stamps='', pfx='c', ko=''):
        self.w, self.ko, self.stamps = w, ko, stamps
        self.sc = ' sc1' if sc1 else ''
        self.p = f'L{pfx}{w}'; self.nst = 0
        self.plan = Plan(w, 'a' in ko)
        if stamps:
            for b, l in list(self.plan.loc.items()):
                if l == ('R', 248): self.plan.loc[b] = ('R', 240)
        self.kvpol = ('nt', 'sc1', '', 'sc0 sc1', 'sc1 nt')[self.opt('n', 1)]
    def opt(self, c, default):
        return int(self.ko[self.ko.index(c) + 1], 36) if c in self.ko else default
    def stamp(self, S):
        if self.stamps == 'L':
            S.raw(f'    s_memtime {s(sST + 2*self.nst, 2)}'); self.nst += 1
            assert self.nst <= 8
    def budget(self, T, again, done=None):
        spin_tail(T, again)
        if done: T(f's_branch {done}')

    def setup(self, S):
        w = self.w
        S(f'''
        s_mov_b32 {s(sQS)}, {QSCALE}
        s_mov_b32 {s(sLo)}, {(127-60) << 23}
        s_mov_b32 {s(sRng)}, {(120 << 23) if 'f' not in self.ko else f2u(44.0) - ((127-60) << 23)}
        s_lshl_b32 {s(sT1)}, {s(sTEAM)}, 19
        s_add_u32 {s(sT1)}, {s(sT1)}, {C2_P}
        s_lshl_b32 {s(sT0)}, {s(sHEAD)}, 7
        s_add_u32 {s(sFLG)}, {s(sT0)}, {FL_KV}
        s_add_u32 {s(sPst)}, {s(sT0)}, {s(sT1)}
        s_add_u32 {s(sPst)}, {s(sPst)}, {w*16384}
        s_lshl_b32 {s(sUpoll)}, {s(sHEAD)}, 12
        s_add_u32 {s(sUpoll)}, {s(sUpoll)}, {s(sT1)}
        s_add_u32 {s(sUpoll)}, {s(sUpoll)}, {RED.get(w, 0)*131072}
        s_lshl_b32 {s(sT1)}, {s(sTEAM)}, 17
        s_and_b32 {s(sMin)}, {s(sT0)}, {0 if 'C' in self.ko else 0x180}
        s_lshr_b32 {s(sMin)}, {s(sMin)}, 1
        s_sub_u32 {s(sT0)}, {s(sT0)}, {s(sMin)}
        s_add_u32 {s(sT0)}, {s(sT0)}, {RED.get(w, 0)*4096}
        s_add_u32 {s(sMin)}, {s(sT1)}, {C2_M + 1024}
        s_add_u32 {s(sMbase)}, {s(sT1)}, {s(sT0)}
        s_add_u32 {s(sRbase)}, {s(sMbase)}, {s(sNEAR)}
        s_add_u32 {s(sRbase)}, {s(sRbase)}, {C2_X}
        s_add_u32 {s(sMbase)}, {s(sMbase)}, {C2_M}
        s_mov_b32 {s(sMout)}, {s(sMbase)}
        s_mov_b32 {s(sRout)}, {s(sRbase)}
        s_xor_b32 {s(sRin)}, {s(sT1)}, 0x20000
        s_add_u32 {s(sRin)}, {s(sRin)}, {s(sNEAR)}
        s_add_u32 {s(sRin)}, {s(sRin)}, {C2_X + 1024}
        s_xor_b32 {s(sT1)}, {s(sNEAR)}, 0x2000
        s_lshl_b32 {s(sKVL)}, {s(sHEAD)}, 15
        s_add_u32 {s(sKVL)}, {s(sKVL)}, {s(sT1)}
        s_add_u32 {s(sKVL)}, {s(sKVL)}, {OFF_KV + w*2048}
        s_lshr_b32 {s(sKML)}, {s(sHEAD)}, 1
        s_lshl_b32 {s(sKML)}, {s(sKML)}, 14
        s_and_b32 {s(sT0)}, {s(sHEAD)}, 1
        s_lshl_b32 {s(sT0)}, {s(sT0)}, 12
        s_add_u32 {s(sKML)}, {s(sKML)}, {s(sT0)}
        s_add_u32 {s(sKML)}, {s(sKML)}, {s(sT1)}
        s_add_u32 {s(sKML)}, {s(sKML)}, {OFF_KM}
        {swz(sKM, sKML)}
        {self.nextKV(0)}
        s_lshl_b32 {s(sFKM)}, {s(sTEAM)}, 5
        s_add_u32 {s(sFKM)}, {s(sFKM)}, {s(sHEAD)}
        s_lshl_b32 {s(sFKM)}, {s(sFKM)}, 6
        s_add_u32 {s(sFKM)}, {s(sFKM)}, {FL_KM}
        s_sub_u32 {s(sNST)}, {s(sNST)}, 1
        s_sub_u32 {s(sHALF)}, {s(sTEAM)}, 1
        s_not_b32 {s(sHALF+1)}, {s(sHALF)}
        s_mov_b32 {s(sPar)}, 1
        s_mov_b32 s92, 0x00ff00ff
        s_mov_b32 s93, 0x00ff00ff
        s_mov_b32 {s(sSTEP)}, 0
        ''')
        if w == 0: S(f's_sub_u32 {s(sMin)}, {s(sMin)}, 1024\ns_sub_u32 {s(sRin)}, {s(sRin)}, 1024')
        for d, m in enumerate((0x0011, 0x1100, 0x0022, 0x2200, 0xF0F0)):
            mm = m | (m << 16)
            S(f's_mov_b32 {s(sMK+2*d)}, {mm}\ns_mov_b32 {s(sMK+2*d+1)}, {mm}')
    def load_weights(self, S):
        w, plan = self.w, self.plan
        A_L, SRC, SRCO, SRC2, WQ, WO, W2, TQ, TO, T2 = 1, 2, 3, 4, 5, 9, 10, 11, 13, 14
        t0, t1, t2, t3, t4 = 16, 17, 18, 19, 20
        S(f'''
        v_lshrrev_b32 {v(t0)}, 4, v0
        v_and_b32 {v(t1)}, 15, v0
        v_lshlrev_b32 {v(t2)}, 13, {v(t0)}
        v_lshl_add_u32 {v(SRC)}, {v(t1)}, 4, {v(t2)}
        v_mul_u32_u24 {v(t2)}, 1280, {v(t0)}
        v_lshl_add_u32 {v(SRCO)}, {v(t1)}, 4, {v(t2)}
        v_lshrrev_b32 {v(t2)}, 3, v0
        v_mul_u32_u24 {v(t2)}, 1280, {v(t2)}
        v_and_b32 {v(t3)}, 7, v0
        v_lshl_add_u32 {v(SRC2)}, {v(t3)}, 4, {v(t2)}
        v_lshlrev_b32 {v(W2)}, 4, v0
        v_add_u32 {v(A_L)}, {lbase(w)}, {v(W2)}
        v_and_b32 {v(t2)}, 1, {v(t0)}
        v_lshlrev_b32 {v(t3)}, 5, {v(t2)}
        v_xor_b32 {v(WQ)}, {v(W2)}, {v(t3)}
        v_xor_b32 {v(WQ+1)}, 64, {v(WQ)}
        v_xor_b32 {v(WQ+2)}, 0x80, {v(WQ)}
        v_xor_b32 {v(WQ+3)}, 0xc0, {v(WQ)}
        v_lshlrev_b32 {v(t3)}, 6, {v(t2)}
        v_xor_b32 {v(WO)}, {v(W2)}, {v(t3)}
        v_xor_b32 {v(WO)}, {(w & 1)*128}, {v(WO)}
        v_lshrrev_b32 {v(t0)}, 5, v0
        v_bfe_u32 {v(t1)}, v0, 4, 1
        v_bfe_u32 {v(t2)}, v0, 3, 1
        v_bfe_u32 {v(t3)}, v0, 2, 1
        v_and_b32 {v(t4)}, 3, v0
        v_lshlrev_b32 {v(t4)}, 3, {v(t4)}
        v_lshl_add_u32 {v(TQ)}, {v(t0)}, 12, {v(t4)}
        v_lshl_add_u32 {v(TQ)}, {v(t1)}, 10, {v(TQ)}
        v_lshl_add_u32 {v(TQ)}, {v(t2)}, 11, {v(TQ)}
        v_lshl_add_u32 {v(TQ)}, {v(t3)}, 8, {v(TQ)}
        v_lshl_add_u32 {v(TQ)}, {v(t3)}, 5, {v(TQ)}
        v_lshl_add_u32 {v(TQ)}, {v(t1)}, 6, {v(TQ)}
        v_lshl_add_u32 {v(TQ)}, {v(t2)}, 7, {v(TQ)}
        v_xor_b32 {v(TQ)}, {64*w}, {v(TQ)}
        v_xor_b32 {v(TQ+1)}, 32, {v(TQ)}
        v_lshl_add_u32 {v(t4)}, {v(t2)}, 5, {v(t4)}
        v_lshlrev_b32 {v(t2)}, 4, {v(t1)}
        v_lshl_add_u32 {v(t2)}, {v(t0)}, 2, {v(t2)}
        v_add_u32 {v(t2)}, {v(t2)}, {v(t3)}
        v_lshl_add_u32 {v(T2)}, {v(t2)}, 7, {v(t4)}
        v_lshl_add_u32 {v(TO)}, {v(t2)}, 8, {v(t4)}
        v_lshl_add_u32 {v(TO)}, {v(t3)}, 6, {v(TO)}
        v_lshl_add_u32 {v(TO)}, {v(t1)}, 7, {v(TO)}
        v_xor_b32 {v(TO)}, {64*w}, {v(TO)}
        ''')
        srd = {'q': 52, 'k': 56, 'v': 60, 'o': 64}
        for m, nm in (('q', 'Wq'), ('k', 'Wk'), ('v', 'Wv'), ('o', 'Wo')):
            S(f's_load_dwordx2 {s(srd[m], 2)}, s[0:1], {ARG[nm]}')
        S('s_waitcnt lgkmcnt(0)')
        for m in 'qkvo': S(f's_mov_b32 {s(srd[m]+2)}, {640*4096*2}\ns_mov_b32 {s(srd[m]+3)}, 0x20000')
        sB, sBr, sBo, sT = 68, 69, 70, 71
        S(f'''
        s_lshl_b32 {s(sT)}, {s(sHEAD)}, 8
        s_mul_i32 {s(sB)}, {s(sTEAM)}, {320*8192}
        s_sub_u32 {s(sBr)}, {320*8192}, {s(sB)}
        s_add_u32 {s(sB)}, {s(sB)}, {s(sT)}
        s_add_u32 {s(sBr)}, {s(sBr)}, {s(sT)}
        s_mul_i32 {s(sBo)}, {s(sHEAD)}, {128*1280}
        s_mul_i32 {s(sT)}, {s(sTEAM)}, 640
        s_add_u32 {s(sBo)}, {s(sBo)}, {s(sT)}
        ''')
        qkv = [(m, c) for c in (0, 5, 1, 6, 2, 7, 3, 8, 4, 9) for m in 'qkv']
        wo = [('o', T, hf) for T in range(2) for hf in range(2)] + [('o', 2)]
        O_ = self.opt('O', 1)
        pieces = wo + qkv if O_ == 0 else qkv + wo if O_ == 1 else [x for i in range(5) for x in qkv[6*i:6*i + 6] + [wo[i]]]
        def blocks(p):
            if p[0] != 'o': return [(p[0], p[1], t) for t in range(2)]
            if p[1] < 2: return [('o', 4*p[1] + w, 2*p[2] + t) for t in range(2)]
            return [('o', 8 + w, j) for j in range(4)] if w < 2 else []
        free = list(range(16, 96, 8)); home = {}
        def need(p):
            bl = blocks(p); return sum(plan.loc[b][0] == 'L' for b in bl) + max(0, 2 - len(bl))
        def issue(p):
            h = [plan.loc[b][1] if plan.loc[b][0] == 'R' else free.pop(0) for b in blocks(p)]
            while len(h) < 2: h.append(free.pop(0))
            home[p] = h
            for i in range(4):
                if len(p) == 3: off, base, ad = (64*p[2] + 16*w + 4*i)*1280 + p[1]*256, sBo, SRCO
                elif p[0] == 'o': off, base, ad = (32*w + 8*i)*1280 + 512, sBo, SRC2
                else: off, base, ad = (64*(p[1] % 5) + 16*w + 4*i)*8192, sB if p[1] < 5 else sBr, SRC
                S(f's_add_u32 {s(sT)}, {s(base)}, {off}')
                S(f'buffer_load_dwordx4 {r(h[i >> 1] + 4*(i & 1), 4)}, {v(ad)}, {s(srd[p[0]], 4)}, {s(sT)} offen')
        DEPTH = self.opt('Q', 6)
        nxt = [0]
        def fill(k):
            while nxt[0] < len(pieces) and nxt[0] < k + DEPTH and need(pieces[nxt[0]]) <= len(free):
                issue(pieces[nxt[0]]); nxt[0] += 1
        fill(0)
        for k, p in enumerate(pieces):
            h = home[p]
            for i in range(4):
                ad = WO if len(p) == 3 else W2 if p[0] == 'o' else WQ + i
                S(f'ds_write_b128 {v(ad)}, {r(h[i >> 1] + 4*(i & 1), 4)} offset:{w*4096 + i*1024}')
            S.wait(lg=0); S('s_barrier')
            for t, b in enumerate(blocks(p)):
                for D in range(4):
                    if len(p) == 3: ad, off = TO, (32*t + 8*(D >> 1) + 2*(D & 1)) * 256
                    elif p[0] == 'o': ad, off = T2, (32*t + 8*(D >> 1) + 2*(D & 1)) * 128 + 64*w
                    else: ad, off = TQ + t, (32*(D >> 1) + 2*(D & 1)) * 256
                    S(f'ds_read_b64_tr_b16 {r(h[t] + 2*D, 2)}, {v(ad)} offset:{off}')
            S.wait(lg=0); S('s_barrier')
            for t, b in enumerate(blocks(p)):
                kind, i = plan.loc[b]
                if kind == 'L':
                    for hh in range(2): S(f'ds_write_b128 {v(A_L)}, {v(h[t] + 4*hh, 4)} offset:{i*2048 + hh*1024}')
            free.extend(x for x in h if x < RES0)
            fill(k + 1)
        S.wait(vm=0, lg=0)
    def lane_consts(self, S):
        w = self.w
        S(f'''
        v_and_b32 v16, 15, v0
        v_lshrrev_b32 v17, 4, v0
        v_and_b32 v18, 1, v16
        v_bfe_u32 v19, v16, 1, 1
        v_mov_b32 v20, 0xaaaa
        v_mul_u32_u24 v18, v18, v20
        v_mul_u32_u24 v19, v19, v20
        v_lshl_add_u32 v18, v19, 16, v18
        v_add_u32 {v(IDX)}, 0x44444444, v18
        v_lshrrev_b32 v18, 1, v17
        v_lshlrev_b32 v18, 6, v18
        v_lshlrev_b32 v19, 3, v16
        v_xor_b32 v18, v18, v19
        v_lshl_add_u32 {v(PX)}, v17, 7, v18
        v_and_b32 v18, 3, v0
        v_lshrrev_b32 v19, 2, v0
        v_lshlrev_b32 v19, 3, v19
        v_lshrrev_b32 v20, 1, v18
        v_lshlrev_b32 v20, 6, v20
        v_xor_b32 v19, v19, v20
        v_lshl_add_u32 {v(PT)}, v18, 7, v19
        v_and_b32 v18, 7, v16
        v_and_b32 v19, 61, v0
        v_lshlrev_b32 {v(PR)}, 4, v19
        v_lshlrev_b32 v19, 12, v17
        v_lshl_add_u32 {v(PP)}, v16, 3, v19
        v_and_b32 v19, 1, v17
        v_lshlrev_b32 v19, 5, v19
        v_lshl_add_u32 v19, v18, 2, v19
        v_lshrrev_b32 v20, 1, v17
        v_lshl_add_u32 {v(PM)}, v20, {6 if 'C' in self.ko else 8}, v19
        v_lshlrev_b32 {v(P4)}, 2, v0
        v_lshlrev_b32 {v(P16)}, 4, v0
        v_add_u32 {v(PL)}, {lbase(w)}, {v(P16)}
        ''')
        if w == 0: S(f'v_add_u32 {v(P4)}, 1024, {v(P4)}')
        if w not in RED: S(f'v_mov_b32 {v(FLG)}, 0')
    def init_rings(self, S):
        w, sc = self.w, self.sc
        zero(S, M, 4)
        if w == 0: S(f'ds_write_b128 {v(P16)}, {v(M,4)} offset:{L_PM}')
        if w not in RED: return
        make_srd(S, WD, 'mem0', 10240)
        S(f'''
        s_add_u32 {s(sT0)}, {s(sHEAD)}, {32*RED[w]}
        s_min_u32 {s(sT0)}, {s(sT0)}, 39
        s_and_b32 {s(sT1)}, {s(sT0)}, 3
        s_mul_i32 {s(sT1)}, {s(sT1)}, 2560
        s_lshr_b32 {s(sT0)}, {s(sT0)}, 2
        s_lshl_b32 {s(sT0)}, {s(sT0)}, 6
        s_add_u32 {s(sT0)}, {s(sT0)}, {s(sT1)}
        s_mul_i32 {s(sT1)}, {s(sTEAM)}, 640
        s_add_u32 {s(sT0)}, {s(sT0)}, {s(sT1)}
        v_bfe_u32 {v(X)}, {v(PM)}, 5, 1
        v_mul_u32_u24 {v(X)}, 1280, {v(X)}
        v_and_b32 {v(X+1)}, 31, {v(PM)}
        v_add_u32 {v(X)}, {v(X)}, {v(X+1)}
        v_lshrrev_b32 {v(X+1)}, 8, {v(PM)}
        v_lshl_add_u32 {v(X)}, {v(X+1)}, 5, {v(X)}
        buffer_load_dword {v(X+2)}, {v(X)}, {s(WD,4)}, {s(sT0)} offen
        v_mov_b32 {v(M+4)}, -1
        ''')
        for i in range(4): S(f'buffer_store_dwordx4 {v(M,4)}, {v(P16)}, {SRD}, {s(sUpoll)} offen offset:{i*1024}{sc}')
        for base, pol in ((sMbase, sc), (sRbase, ' sc1')):
            for slot in range(1, 4):
                S(f's_add_u32 {s(sT0)}, {s(base)}, {slot*MB}')
                S(f'buffer_store_dword {v(M+4)}, {v(PM)}, {SRD}, {s(sT0)} offen{pol}')
            S(f'buffer_store_dword {v(X+2)}, {v(PM)}, {SRD}, {s(base)} offen{pol}')
    def nextKV(self, n=1):
        if 'k' in self.ko: n = 0
        return f's_add_u32 {s(sKVL)}, {s(sKVL)}, {n*32*KVB}\n{swz(sKN, sKVL)}\ns_add_u32 {s(sVV)}, {s(sKN)}, 16384'
    def ldK(self):
        return [f'buffer_load_dwordx4 {v(KN + 4*j,4)}, {v(P16)}, {SRD}, {s(sKN)} offen offset:{j*1024} {self.kvpol}' for j in range(2)] + \
               [f'buffer_load_dwordx4 {v(VN + 4*t,4)}, {v(P16)}, {SRD}, {s(sVV)} offen offset:{t*1024} {self.kvpol}' for t in range(2)]
    def idle(self, S):
        P = self.plan
        for i in range(4): S(mov2(K + 2*i, KN + 2*i))
        for i in range(4): S(mov2(V + 2*i, VN + 2*i))
        for i, (sl, gap) in P.p1_nr.items():
            if gap is None:
                for x in P.fetch(P.p1[i], sl): S(x)
        zero(S, VA, 8)
    def unset(self):
        return f'v_mov_b64 {v(M,2)}, -1\nv_mov_b64 {v(M+2,2)}, -1\nv_mov_b32 {v(Q0)}, -1'
    def enter(self, S):
        for x in self.ldK(): S(x)
        S(self.nextKV()); S(self.unset())

    def body(self, S, O):
        w, p, sc, ko, P = self.w, self.p, self.sc, self.ko, self.plan
        self.nst = 0
        co = P.co
        hd = 'd' * ('h' in ko)
        def br(lab_):
            def f(T): T(f's_cbranch_vccnz {p}_{lab_}{hd}'); T.label(f'{p}_{lab_}d')
            return f
        def bar(tag):
            def f(T): T.wait(tag=tag); T('s_barrier')
            return f
        acc = {('q', 0): X, ('q', 1): X + 4, ('k', 0): X + 8, ('k', 1): X + 12, ('v', 0): VA, ('v', 1): VA + 4}
        rdA = lambda c, buf: f'ds_read_b128 {v(buf,4)}, {v(P16)} offset:{c*1024}'
        o4, oq = max(w - 1, 0)*1024, 3072 + w*256
        lq = 4096 + w*256 - (1024 if w == 0 else 0)
        def ldM(so, b, q): return [f'buffer_load_dwordx4 {v(b,4)}, {v(P16)}, {SRD}, {s(so)} offen offset:{o4} sc1', f'buffer_load_dword {v(q)}, {v(P4)}, {SRD}, {s(so)} offen offset:{oq} sc1']
        def wrM(h, b, q): return [(f'ds_write_b128 {v(P16)}, {v(b,4)} offset:{(5*h + w)*1024}', 'mw'), (f'ds_write_b32 {v(P4)}, {v(q)} offset:{5120*h + lq}', 'mw')]
        def ckM(b, q): return [f'v_max3_u32 {v(q)}, {v(q)}, {v(b)}, {v(b+1)}', f'v_max3_u32 {v(q)}, {v(q)}, {v(b+2)}, {v(b+3)}', f'v_cmp_eq_u32 vcc, -1, {v(q)}']
        fill = {i: [] for i in range(52)}
        for lst, tab in ((P.p1, P.p1_nr), (P.vv, P.vv_nr)):
            for i, (slot, gap) in tab.items():
                if gap is not None:
                    f = P.fetch(lst[i], slot); fill[gap[0]].append(f[0]); fill[gap[1]].append(f[1])
        S.label(f'{p}_top'); S.alive = PL
        KA = f'v_mov_b32 {v(PL)}, {v(PL)}'
        fl = w == FLGW and 'F' in ko
        ldF = [f'v_and_b32 {v(Q0)}, 0x30, {v(P16)}', f'buffer_load_dword {v(FLG)}, {v(Q0)}, {SRD}, {s(sFLG)} offen sc1']
        ldR = ldM(sRin, RB, Q2)
        RD = self.opt('D', 0)
        spin = w in RED and 'W' in ko
        HB = self.opt('H', 2) + (self.opt('Z', 2) if spin else 0)
        T = Stream(); self.idle(T); zero(T, X, 16)
        work = [o.text for o in T.out]; n0 = self.opt('i', 8); n1 = self.opt('I', 28)
        ldA = [(x, 'junk') for x in ldM(sMin, M, Q0)]; wrA = wrM(0, M, Q0)
        ckA = [f'v_max3_u32 {v(Q2)}, {v(M)}, {v(M+1)}, {v(M+2)}', f'v_max3_u32 {v(Q2)}, {v(Q2)}, {v(M+3)}, {v(Q0)}', f'v_cmp_eq_u32 vcc, -1, {v(Q2)}']
        S.gap([work[:n0] + ldA + work[n0:n1] + ldA + work[n1:]]); S.force_wait(lg=0)
        S.label(f'{p}_pb')
        cnt = 's_add_u32 s90, s90, 1' if self.stamps else None
        if spin:
            S.vm = []
            for j in range(self.opt('U', 3)):
                S.gap([ckA]); S(f's_cbranch_vccz {p}_pcd')
                if hd: S(f's_branch {p}_pcd')
            S.gap([ldA, cnt]); self.budget(S, f'{p}_pb')
        else:
            S.force_wait(vm=3); S.vm = []; S(ckA[0]); S.force_wait(vm=2); S.gap([ckA[1:] + wrA])
            S(f's_cbranch_vccnz {p}_pc{hd}')
            T = Stream(); T.label(f'{p}_pc'); T.gap([ldA, cnt]); self.budget(T, f'{p}_pb', f'{p}_pcd'); O.append(T.text())
        S.label(f'{p}_pcd'); S.vm = [(set(), 'mp')]
        self.stamp(S)
        pend = [rdA(co[1], Y), rdA(co[2], Y + 4)] + fill[2] + fill[3] + fill[4] + fill[5]
        if spin: S(*wrA[0])
        for i in range(6):
            m, c, t = P.p1[i]
            S(SMF(acc[m, t], M, P.reg(P.p1, P.p1_nr, i)))
            if spin and i == 0: S(*wrA[1])
            if i in (RD + spin, RD + spin + 1): S(ldR[i - RD - spin])
            if i == HB: S.force_wait(lg=0); S('s_barrier')
            if i >= HB:
                n = 1 if i == HB and i < 5 else -(-len(pend) // (6 - i))
                for _ in range(n): S(pend.pop(0))
        S.label(f'{p}_pad'); S.raw('; @a')
        fill[18].insert(0, lambda T: T.wait(tag='mp'))
        abuf = {co[1]: Y, co[2]: Y + 4, co[3]: Y, co[4]: Y + 4, co[5]: RB, co[6]: Y, co[7]: Y + 4, co[8]: ZB, co[9]: ZB + 4}
        GR = self.opt('G', 27)
        for k, g in ((3, 12), (4, 17), (6, GR + 5), (7, GR + 6), (8, GR + 7), (9, GR + 8)): fill[g].insert(0, rdA(co[k], abuf[co[k]]))
        wr = wrM(1, RB, Q2)
        ck = [f'v_max3_u32 {v(Q0)}, {v(RB)}, {v(RB+1)}, {v(RB+2)}', f'v_max3_u32 {v(Q0)}, {v(Q0)}, {v(RB+3)}, {v(Q2)}', f'v_cmp_eq_u32 vcc, -1, {v(Q0)}']
        fill[GR] += [[wr[0]] + ck]; fill[GR + 1] += [wr[1]]
        if 'X' in ko or 'Y' in ko: wr = wrM(1, K, K); fill[GR][-1] = ck[:1] + [wr[0]] + ck[1:]; fill[GR + 1][-1] = wr[1]
        fill[GR + 2].append(br('rr') if 'Y' not in ko and 'X' not in ko else f'{p}_rrd:\nv_mov_b64 {v(RB,2)}, 0\nv_mov_b64 {v(RB+2,2)}, 0'); fill[GR + 5].insert(0, bar('mw'))
        if self.stamps: fill[GR + 5].insert(1, self.stamp)
        ob = Stream(); ob.label(f'{p}_rr')
        if self.stamps: ob('s_add_u32 s91, s91, 1')
        ob.gap([ldR]); ob.gap([wr]); ob.gap([ck]); ob.force_wait(lg=0); ob(f's_cbranch_vccz {p}_rrd'); self.budget(ob, f'{p}_rr', f'{p}_rrd'); O.append(ob.text())
        for x, g in zip(self.ldK(), ((38, 41, 46, 48), (37, 42, 46, 48), (36, 40, 45, 48), (37, 41, 46, 48))[w]): fill[g].append(x)
        ring = lambda x: [f's_add_u32 {s(x)}, {s(x)}, {MB}', f's_bitset0_b32 {s(x)}, 16']
        for j, x in enumerate(ring(sMin) + ring(sMout) + ring(sRout)): fill[(7, 9, 11, 13, 15, 17)[j]].append(x)
        fill[30] += ring(sRin)
        stF = f'buffer_store_dword {v(Q1)}, off, {SRD}, {s(sFKM)} sc1'
        if w in RED:
            fill[31] += [f'v_mov_b32 {v(Q1)}, -1']; fill[20] += [f's_xor_b32 {s(sT0)}, {s(sRout)}, {2*MB}']; fill[22] += [f's_xor_b32 {s(sT1)}, {s(sMout)}, {2*MB}']
            fill[39 - w//2] += [f'buffer_store_dword {v(Q1)}, {v(PM)}, {SRD}, {s(sT1)} offen{sc}']
            fill[40 + w] += [f'buffer_store_dword {v(Q1)}, {v(PM)}, {SRD}, {s(sT0)} offen sc1']
        if w == 3: fill[31].append(f'v_mov_b32 {v(Q1)}, {s(sSTEP)}'); fill[39].append(stF)
        if fl: fill[31].append(ldF[0]); fill[40].append(ldF[1])
        nt = len(P.tiles)
        pw = {sl: P.fetch(P.wo[i], sl) for i, (sl, g) in P.wo_nr.items()}
        ONES = RB
        EA = 'a' in ko
        for i in range(4): fill[(46 if EA else 36) + i].append(f'v_mov_b32 {v(ONES+i)}, 0x3f803f80')
        post = lambda a_, d: [f'v_add_f32 {v(a_)}, {v(a_)}, {v(a_+1)}', f'v_add_f32 {v(a_+2)}, {v(a_+2)}, {v(a_+3)}', f'v_cvt_pk_bf16_f32 {v(d)}, {v(a_)}, {v(a_+2)}']
        qp = post(X, X) + post(X + 4, X + 1); kp = post(X + 8, X + 8) + post(X + 12, X + 9)
        wrq = lambda m: (f'ds_write_b64 {v(PX)}, {v(X + 8*m, 2)} offset:{L_QK + 2048*m + 512*w}', 'qk')
        tr = [f'ds_read_b64_tr_b16 {v(X + 8*m + 2*j, 2)}, {v(PT)} offset:{L_QK + 2048*m + j*512}' for m in range(2) for j in range(4)]
        for i in range(3): fill[44 - 2*EA + i] += qp[2*i:2*i + 2]
        fill[47 - 2*EA].append(wrq(0)); fill[51 - 2*EA] = [bar('qk'), tr[0]] + fill[51 - 2*EA]
        if EA: fill[50] += tr[1:3]; fill[51] += tr[3:4]
        for i in range(6, 52):
            m, c, t = P.p1[i]
            S(SMF(acc[m, t], abuf[c], P.reg(P.p1, P.p1_nr, i)))
            if i == 51: self.stamp(S)
            S.gap(fill[i])
            if i in (17, 26, 35, 43, 50, 51): S.raw('; @' + {17: 'b', 26: 'c', 35: 'd', 43: 'e', 50: 'f', 51: 'g'}[i])
        vi = [0]
        def Vp(*g):
            i = vi[0]; vi[0] += 1; m, c, t = P.vv[i]
            S(SMF(acc[m, t], abuf[c], P.reg(P.vv, P.vv_nr, i))); S.gap(list(g))
        dppadd = lambda d, a_, b: f'v_add_f32_dpp {v(d)}, {v(a_)}, {v(b)} quad_perm:[2,3,0,1] row_mask:0xf bank_mask:0xf'
        dup = lambda d, a_: f'v_mov_b32_dpp {v(d)}, {v(a_)} quad_perm:[0,1,0,1] row_mask:0xf bank_mask:0xf'
        VP = Q1
        vpost = post(VA, VP) + post(VA + 4, VP + 1)
        half = lambda x: None if 'p' in ko else [f's_mov_b64 exec, {s(sHALF,2)}', x, 's_mov_b64 exec, -1']
        pubv = half(f'buffer_store_dwordx2 {v(VP,2)}, {v(PX)}, {SRD}, {s(sKM)} offen offset:{2048 + w*512} sc1')
        pubk = half(f'buffer_store_dwordx4 {v(X + 8 + 4*(w & 1), 4)}, {v(P16)}, {SRD}, {s(sKM)} offen offset:{(w & 1)*1024} sc1') if w >= 2 else None
        expX = lambda t_: [f'v_exp_f32 {v(t_)}, {v(M)}', f'v_exp_f32 {v(t_+1)}, {v(M+1)}', f'v_cvt_pk_bf16_f32 {v(t_)}, {v(t_)}, {v(t_+1)}',
                           (f'ds_write_b32 {v(P16)}, {v(t_)} offset:{L_PX + 4*w}', 'pw')]
        expM = [f'v_mov_b32 {v(X+5)}, 0'] + [f'v_exp_f32_dpp {v(M+4+i)}, {v(M+2+i)} quad_perm:[0,1,0,1] row_mask:0xf bank_mask:0xf' for i in range(2)] + \
               [f'v_mov_b32 {v(X+6)}, 0'] + [f'v_cvt_pk_bf16_f32 {v(X+i)}, {v(M+4)}, {v(M+5)}' for i in (4, 7)]
        rdP = f'ds_read_b128 {v(X,4)}, {v(PR)} offset:{L_PX}'
        mark = lambda c: S.raw('; @' + c)
        if EA:
            Vp(kp); S(MF32(M, K, X)); S.gap([wrq(1)]); mark('h')
            S(MF32(M, K + 4, X + 4, M)); Vp()
        else:
            Vp(tr[1:4]); S.gap([kp]); Vp(wrq(1)); mark('h')
            S(MF32(M, K, X)); S(MF32(M, K + 4, X + 4, M))
        Vp(bar('qk'), tr[4]); Vp(tr[5:]); mark('i')
        S.gap([[dppadd(M, M + 2, M), dppadd(M + 1, M + 3, M + 1)] + expX(M + 2)]); mark('j')
        S(MF32(M + 4, X + 8, X)); S.gap([pw[K][0]]); S(MF32(M + 4, X + 12, X + 4, M + 4)); S.gap([pw[K][1], z2(X + 12) if nt == 3 else None])
        Vp(z2(X + 14) if nt == 3 else None, bar('pw'), self.stamp, rdP); mark('k')
        mp = [dppadd(M + 4, M + 6, M + 4), dppadd(M + 5, M + 7, M + 5), f'v_mul_f32 {v(M+2)}, {s(sQS)}, {v(M+4)}', f'v_mul_f32 {v(M+3)}, {s(sQS)}, {v(M+5)}'] + expM
        Vp(mp[0:2]); Vp(mp[2:4]); Vp(mp[5:7]); mark('l')
        assert vi[0] == 8
        LL = X + 12 if w == 2 else X + 8
        wacc = [VA, VA + 4, X + 12]
        def pv(T, first):
            f = (lambda x: x) if first else (lambda x: None)
            T.hoist = False; T(MF32(LL, ONES, X)); T.hoist = True; T.gap([f([mp[4], mp[8]])])
            T(MF32(Y, V, X)); T.gap([f(vpost[0:3])])
            T(MF32(Y + 4, V + 4, X)); T.gap([f(vpost[3:])])
            T(MF16(LL, ONES, X + 4, LL)); T.gap([f([mp[7], mp[9]])])
            T(MF16(Y, VP, X + 4, Y)); T.gap([f([z2(VA), z2(VA + 2)])])
            T(MF16(Y + 4, VP, X + 6, Y + 4)); T.gap([f([z2(VA + 4), z2(VA + 6)])])
            T(f'v_rcp_f32 {v(LL+1)}, {v(LL)}')
            if first: T(f'v_subrev_u32 {v(LL+2)}, {s(sLo)}, {v(LL)}\nv_cmp_le_u32 vcc, {s(sRng)}, {v(LL+2)}')
        OP = M + 4
        def norm(T):
            for t in range(2):
                for i in range(4): T(f'v_mul_f32 {v(Y + 4*t + i)}, {v(LL+1)}, {v(Y + 4*t + i)}')
                for i in range(2): T(f'v_cvt_pk_bf16_f32 {v(OP + 2*t + i)}, {v(Y + 4*t + 2*i)}, {v(Y + 4*t + 2*i + 1)}')
            T(f'ds_write_b128 {v(P16)}, {v(OP,4)} offset:{L_O + w*1024}', tag='ow')
        pv(S, True); S.raw('; @m'); norm(S); br('fb')(S); S.raw('; @n')
        self.stamp(S)
        fb = Stream(); fb.label(f'{p}_fb'); fb.force_wait(lg=0); fb('s_nop 11')
        fb('s_barrier')
        fb(f'v_max_f32 {v(X)}, {v(M)}, {v(M+1)}\nv_max3_f32 {v(X)}, {v(X)}, {v(M+2)}, {v(M+3)}')
        fb(f'ds_write_b32 {v(P16)}, {v(X)} offset:{L_MX + 4*w}')
        fb.wait(lg=0); fb('s_barrier')
        fb(f'v_and_b32 {v(Y)}, 0xff, {v(P16)}')
        tm = (X, X + 4, ZB, ZB + 4)
        for g in range(4): fb(f'ds_read_b128 {v(tm[g], 4)}, {v(Y)} offset:{L_MX + g*256}')
        fb(f'v_max_f32 {v(Y)}, {v(X)}, {v(X+1)}')
        for i in range(1, 8): fb(f'v_max3_f32 {v(Y)}, {v(Y)}, {v(tm[i >> 1] + 2*(i & 1))}, {v(tm[i >> 1] + 2*(i & 1) + 1)}')
        for i in range(4): fb(f'v_sub_f32 {v(M+i)}, {v(M+i)}, {v(Y)}')
        fb.gap([expX(Y) + expM])
        fb.wait(lg=0); fb('s_barrier')
        fb(rdP); pv(fb, False); norm(fb); fb.force_wait(lg=0); fb('s_nop 11'); fb(f's_branch {p}_fbd')
        O.append(fb.text())
        ofr = {w: OP}
        for j in (1, 2, 3): ofr[w ^ j] = X + 4*(j - 1)
        WB = lambda i: P.reg(P.wo, P.wo_nr, i)
        rdO = [f'ds_read_b128 {v(ofr[w ^ j],4)}, {v(P16)} offset:{L_O + (w ^ j)*1024}' for j in (1, 2, 3)]
        S(SMF(wacc[0], OP, WB(0), wo=True)); S.gap([f's_cmp_eq_u32 {s(sSTEP)}, {s(sNST)}', pubv, pubk])
        if nt == 3: S(SMF(wacc[1], OP, WB(1), wo=True))
        S.gap([pw[ZB]])
        S.wait(tag='ow'); S('s_barrier'); S(rdO[0])
        S(SMF(wacc[nt - 1], OP, WB(nt - 1), wo=True)); S.gap([rdO[1:]]); mark('o')
        if 'A' in ko: KA = 's_nop 0'
        S(KA); S(f's_cbranch_scc1 {p}_exit'); S(KA)
        S(f's_add_u32 {s(sT0)}, {s(sPst)}, 65536\ns_add_u32 {s(sT1)}, {s(sPst)}, 131072'); S(KA)
        def put(i):
            ac = wacc[i]
            return [f'v_cvt_pk_bf16_f32 {v(ac)}, {v(ac)}, {v(ac+1)}', f'v_and_or_b32 {v(ac)}, {v(ac)}, -2, {s(sPar)}',
                    f'v_cvt_pk_bf16_f32 {v(ac+1)}, {v(ac+2)}, {v(ac+3)}',
                    (f'buffer_store_dwordx2 {v(ac,2)}, {v(PP)}, {SRD}, {s((sPst, sT0, sT1)[i])} offen{sc}', f'st{i}')]
        q = []
        for i in range(nt):
            for j in (1, 2, 3):
                S(SMF(wacc[i], ofr[w ^ j], WB(nt + 3*i + j - 1), wo=True))
                if i == 0 and j < 3: S(pw[V][j - 1])
                if i and j == 2: q += put(i - 1)
                if q and not (i == nt - 1 and j == 3):
                    g = [q.pop(0)]
                    if isinstance(g[0], tuple) and q: g.append(q.pop(0))
                    S.gap([g])
        S.gap([q + put(nt - 1)])
        S.raw('; @p')
        self.stamp(S)
        S(f's_add_u32 {s(sKML)}, {s(sKML)}, {16*16384}\n{swz(sKM, sKML)}\ns_add_u32 {s(sSTEP)}, {s(sSTEP)}, 1')
        S(self.nextKV())
        E = self.opt('E', 0)
        if w in RED:
            if RED[w]:
                S(f's_cmp_ge_u32 {s(sHEAD)}, 8\ns_cbranch_scc1 {p}_nored')
                ob = Stream(); ob.label(f'{p}_nored'); ob.force_wait(vm=0)
                ob(f's_branch {p}_redd'); O.append(ob.text())
            SEL, RA = M, M + 4
            S(f'v_mov_b32 {v(RA)}, 0x3f80\nv_cndmask_b32 {v(RA)}, {v(RA)}, 1.0, {s(sMK+8,2)}')
            for d in range(4): S(f'v_cndmask_b32 {v(SEL+d)}, 0, {v(RA)}, {s(sMK+2*d,2)}')
            if 'U' in ko:
                for _ in range(self.opt('U', 0) + (1 - RED[w])*self.opt('u', 0)):
                    S(f'ds_read_b128 {v(RB,4)}, {v(P16)}'); S.wait(lg=0)
            else: S.wait(tag='st%d' % self.opt('RS'[RED[w]], nt - 1))
            self.stamp(S)
            NS = self.opt('B', 2)
            sets = (X, K, VA)[:NS]
            ld1 = lambda b: [f'buffer_load_dwordx4 {v(b + 4*i,4)}, {v(P16)}, {SRD}, {s(sUpoll)} offen offset:{i*1024} sc1' for i in range(4)]
            def red1(T, b):
                T.hoist = False
                for i in range(4):
                    T(MF32(RA, SEL, b + 4*i, RA if i else None))
                    T(f'v_bitop3_b32 {v(b + 4*i + 1)}, {v(b + 4*i)}, {v(b + 4*i + 2)}, {s(sPar)} bitop3:0x7e')
                    if i == 2: T(f'v_or3_b32 {v(b+1)}, {v(b+1)}, {v(b+5)}, {v(b+9)}\nv_and_b32 {v(b+1)}, 1, {v(b+1)}')
                T(f'v_and_or_b32 {v(b+1)}, {v(b+13)}, 1, {v(b+1)}\nv_cmp_ne_u32 vcc, 0, {v(b+1)}')
                T(f'''v_add_f32_dpp {v(RA+2)}, {v(RA)}, {v(RA)} row_ror:8 row_mask:0xf bank_mask:0xf
                v_add_f32_dpp {v(RA+3)}, {v(RA+1)}, {v(RA+1)} row_ror:8 row_mask:0xf bank_mask:0xf
                v_cvt_pk_bf16_f32 {v(Q2)}, {v(RA+2)}, {v(RA+3)}''')
                T.hoist = True
            for j in range(NS):
                S.gap([ld1(sets[j])])
                if j < NS - 1:
                    for _ in range(self.opt('J', 1)): S(f'ds_read_b128 {v(RB,4)}, {v(P16)}'); S.wait(lg=0)
            red1(S, sets[0]); st1 = S.state(); br('r1')(S)
            T = Stream(st1); T.label(f'{p}_r1')
            for j in range(NS):
                if self.stamps: T('s_add_u32 s89, s89, 1')
                for x in ld1(sets[j]): T(x, tag='junk')
                red1(T, sets[(j + 1) % NS]); T(f's_cbranch_vccz {p}_r1d')
            self.budget(T, f'{p}_r1', f'{p}_r1d'); O.append(T.text())
            two = [f'buffer_store_dword {v(Q2)}, {v(PM)}, {SRD}, {s(sMout)} offen{sc}', f'buffer_store_dword {v(Q2)}, {v(PM)}, {SRD}, {s(sRout)} offen' + ('' if 'X' in ko else ' sc1')]
            if 'm' in ko: two = ['s_mov_b64 exec, s[92:93]'] + two + ['s_mov_b64 exec, -1']
            S.gap([two[::-1] if 'T' in ko else two])
            self.stamp(S)
            if RED[w]: S.label(f'{p}_redd')
            S(self.unset())
        else:
            S.wait(vm=0); self.stamp(S)
            self.stamp(S)
            if fl:
                S(f's_add_u32 {s(sT0)}, {s(sSTEP)}, 2\ns_min_u32 {s(sT0)}, {s(sT0)}, 64\nv_cmp_gt_u32 vcc, {s(sT0)}, {v(FLG)}')
                br('kv')(S)
                ob = Stream(); ob.label(f'{p}_kv'); ob.gap([ldF]); ob(f'v_cmp_gt_u32 vcc, {s(sT0)}, {v(FLG)}\ns_cbranch_vccz {p}_kvd')
                self.budget(ob, f'{p}_kv', f'{p}_kvd'); O.append(ob.text())
        S(f's_xor_b32 {s(sPar)}, {s(sPar)}, 1')
        if self.stamps:
            S.force_wait(lg=0)
            S(f's_mov_b32 m0, {s(sSTEP)}')
            for i in range(8): S(f'v_writelane_b32 {v(248 + i)}, {s(sST + 2*i)}, m0')
        if w in RED: S.force_wait(vm=2)
        if w == 2 and E == 1: S.wait(vm=1)
        if E < 2: S('s_barrier')
        S(f's_branch {p}_top')
        S.raw(f'{p}_exit:\n    s_waitcnt vmcnt(0) lgkmcnt(0)\n    s_barrier')
        if w == 3: S.raw(f'    s_add_u32 {s(sSTEP)}, {s(sSTEP)}, 1\n    v_mov_b32 {v(Q1)}, {s(sSTEP)}\n    {stF}')

    def loop_text(self):
        S1 = Stream(); self.body(S1, [])
        O = []
        S2 = Stream(S1.state()); self.body(S2, O)
        assert S1.vm == S2.vm and S1.lg == S2.lg, (S1.vm, S2.vm)
        t = S2.text()
        if self.stamps.startswith('t'):
            lo, st = map(int, self.stamps[1:].split('x'))
            out = []; n = -1; k = 0
            for l in t.split('\n'):
                if l == f'{self.p}_pad:': n = 0
                if n >= 0 and l.startswith('    '):
                    if n >= lo and (n - lo) % st == 0 and k < 8: out.append(f'    s_memtime {s(sST + 2*k, 2)}'); k += 1
                    n += 1
                out.append(l)
            t = '\n'.join(out)
        return t, ''.join(O)
```

```python
from common import *
P16, PL, IDX, PX, PT, PR, PP, PM = range(8)
FLG = PM
RV, VP, RB, X, VA, Y, M, K, V, ZC, ZA, ZB = 8, 10, 12, 16, 32, 40, 48, 56, 64, 72, 80, 88
RES0 = 96
L_QK, L_PX, L_KV, L_W = 10240, 14336, 16384, 32768
L_O, L_MX = L_QK, 0
NLS = (10, 10, 6, 6)
MEMW, PUBW, FLGW = 3, 1, 1
RED = {2: 0, 0: 1}
WD = 8
sHEAD = sMEM
sSTEP = 14
sPst, sUpoll, sPar, sMin, sMout, sRin, sKN, sKM, sRout, sT0, sT1, sFLG, sQS, sLo, sRng, sNST, sVV, sMbase, sRbase, sNEAR = range(16, 36)
sHALF = 36
sFKM = 100
sXo, sXi, sXr, sM4, sR4, sSL = 96, 97, 86, 101, 88, 92
sKVL, sKML = 98, 99
sMK = 38
sST = 48
def lbase(w): return L_W + sum(NLS[:w]) * 2048
def SMF(acc, A, B, wo=False):
    return f'v_smfmac_f32_16x16x64_bf16 {v(acc,4)}, {v(A,4)}, {r(B,8)}, {v(IDX)}' + (' abid:1' if wo else '')
def zero(S, reg, n):
    for i in range(0, n, 2): S(f'v_mov_b64 {v(reg + i, 2)}, 0')
mov2 = lambda d, a_: f'v_mov_b64 {v(d,2)}, {v(a_,2)}'
z2 = lambda x: f'v_mov_b64 {v(x,2)}, 0'

class Plan:
    def __init__(self, w, nf=2):
        self.w = w
        self.tiles = [w, 4 + w] + ([8 + w] if w < 2 else [])
        lo = [w, 4, w ^ 1, w ^ 2, w ^ 3]
        self.co = co = lo + [5 + c for c in lo]
        T = lambda m, cs: [(m, c, t) for c in cs for t in range(2)]
        kk = T('k', co[5:])
        self.p1 = T('v', co[:2]) + T('q', co[:2]) + T('k', co[:2]) + T('v', co[2:5]) + [x for c in co[2:5] for x in T('q', [c]) + T('k', [c])]
        self.p1 += T('q', co[5:7]) + kk[:nf] + T('q', co[7:]) + kk[nf:]
        self.vv = []; self.vv_nr = {}
        nt = len(self.tiles)
        self.wo = [('o', T_, w) for T_ in self.tiles] + [('o', T_, w ^ j) for T_ in self.tiles for j in (1, 2, 3)]
        q = {i: (sl, None) for i, sl in enumerate([ZB, Y, ZC])}
        q[18] = (ZC, (12, 13))
        if w < 2: q.update({20: (M, (14, 15)), 22: (ZA, (16, 17)), 28: (ZC, (22, 23)), 30: (M, (24, 25))})
        self.p1_nr = q
        self.wo_nr = {0: (K, None), nt + 3: (V, None)}
        self.loc = {}
        nr = nl = 0
        for lst, tab in ((self.p1, self.p1_nr), (self.vv, self.vv_nr), (self.wo, self.wo_nr)):
            for i, b in enumerate(lst):
                if i in tab: self.loc[b] = ('L', nl); nl += 1
                else: self.loc[b] = ('R', RES0 + 8*nr); nr += 1
        assert nl == NLS[w] and RES0 + 8*nr == 512, (w, nl, nr)
    def fetch(self, b, slot):
        return [f'ds_read_b128 {v(slot + 4*h, 4)}, {v(PL)} offset:{self.loc[b][1]*2048 + h*1024}' for h in range(2)]
    def reg(self, lst, tab, i): return tab[i][0] if i in tab else self.loc[lst[i]][1]

class Chain:
    def __init__(self, w, sc1=False, stamps='', pfx='c', ko=''):
        self.w, self.ko, self.stamps = w, ko, stamps
        self.sc = ' sc1' if sc1 else ''
        self.p = f'L{pfx}{w}'; self.nst = 0
        self.plan = Plan(w, self.opt('N', 2))
        if stamps:
            for b, l in list(self.plan.loc.items()):
                if l == ('R', 248): self.plan.loc[b] = ('R', 240)
        self.kvpol = ('nt', 'sc1', '', 'sc0 sc1', 'sc1 nt')[self.opt('n', 1)]
    def opt(self, c, default):
        return int(self.ko[self.ko.index(c) + 1], 36) if c in self.ko else default
    def stamp(self, S):
        if self.stamps == 'L':
            S.raw(f'    s_memtime {s(sST + 2*self.nst, 2)}'); self.nst += 1
            assert self.nst <= 8
    def budget(self, T, again, done=None):
        spin_tail(T, again)
        if done: T(f's_branch {done}')

    def setup(self, S):
        w = self.w
        S(f'''
        s_mov_b32 {s(sQS)}, {QSCALE}
        s_mov_b32 {s(sLo)}, {(127-60) << 23}
        s_mov_b32 {s(sRng)}, {120 << 23}
        s_lshl_b32 {s(sT1)}, {s(sTEAM)}, 19
        s_add_u32 {s(sT1)}, {s(sT1)}, {C2_P}
        s_lshl_b32 {s(sT0)}, {s(sHEAD)}, 7
        s_add_u32 {s(sFLG)}, {s(sT0)}, {FL_KV}
        s_add_u32 {s(sPst)}, {s(sT0)}, {s(sT1)}
        s_add_u32 {s(sPst)}, {s(sPst)}, {w*16384}
        s_lshl_b32 {s(sUpoll)}, {s(sHEAD)}, 12
        s_add_u32 {s(sUpoll)}, {s(sUpoll)}, {s(sT1)}
        s_add_u32 {s(sUpoll)}, {s(sUpoll)}, {RED.get(w, 0)*131072}
        s_lshl_b32 {s(sT1)}, {s(sTEAM)}, 17
        s_and_b32 {s(sMin)}, {s(sT0)}, 0x180
        s_lshr_b32 {s(sMin)}, {s(sMin)}, 1
        s_sub_u32 {s(sT0)}, {s(sT0)}, {s(sMin)}
        s_add_u32 {s(sT0)}, {s(sT0)}, {RED.get(w, 0)*4096}
        s_add_u32 {s(sMin)}, {s(sT1)}, {C2_M + w*1024}
        s_add_u32 {s(sMbase)}, {s(sT1)}, {s(sT0)}
        s_add_u32 {s(sRbase)}, {s(sMbase)}, {s(sNEAR)}
        s_add_u32 {s(sRbase)}, {s(sRbase)}, {C2_X}
        s_add_u32 {s(sMbase)}, {s(sMbase)}, {C2_M}
        s_mov_b32 {s(sMout)}, {s(sMbase)}
        s_mov_b32 {s(sRout)}, {s(sRbase)}
        s_xor_b32 {s(sRin)}, {s(sT1)}, 0x20000
        s_add_u32 {s(sRin)}, {s(sRin)}, {s(sNEAR)}
        s_add_u32 {s(sRin)}, {s(sRin)}, {C2_X + w*1024}
        s_xor_b32 {s(sT1)}, {s(sNEAR)}, 0x2000
        s_lshl_b32 {s(sKVL)}, {s(sHEAD)}, 15
        s_add_u32 {s(sKVL)}, {s(sKVL)}, {s(sT1)}
        s_add_u32 {s(sKVL)}, {s(sKVL)}, {OFF_KV + w*2048}
        s_lshr_b32 {s(sKML)}, {s(sHEAD)}, 1
        s_lshl_b32 {s(sKML)}, {s(sKML)}, 14
        s_and_b32 {s(sT0)}, {s(sHEAD)}, 1
        s_lshl_b32 {s(sT0)}, {s(sT0)}, 12
        s_add_u32 {s(sKML)}, {s(sKML)}, {s(sT0)}
        s_add_u32 {s(sKML)}, {s(sKML)}, {s(sT1)}
        s_add_u32 {s(sKML)}, {s(sKML)}, {OFF_KM}
        {swz(sKM, sKML)}
        {self.nextKV(0)}
        s_lshl_b32 {s(sFKM)}, {s(sTEAM)}, 5
        s_add_u32 {s(sFKM)}, {s(sFKM)}, {s(sHEAD)}
        s_lshl_b32 {s(sFKM)}, {s(sFKM)}, 6
        s_add_u32 {s(sFKM)}, {s(sFKM)}, {FL_KM}
        s_sub_u32 {s(sNST)}, {s(sNST)}, 1
        s_sub_u32 {s(sHALF)}, {s(sTEAM)}, 1
        s_not_b32 {s(sHALF+1)}, {s(sHALF)}
        s_mov_b32 {s(sPar)}, 1
        s_mov_b32 {s(sSTEP)}, 0
        ''')
        S(f'''s_add_u32 {s(sM4)}, {s(sMin)}, {(4 - w)*1024}
        s_add_u32 {s(sR4)}, {s(sRin)}, {(4 - w)*1024}
        s_lshr_b32 {s(sXo)}, {s(sHEAD)}, 2
        s_lshl_b32 {s(sXo)}, {s(sXo)}, 14
        s_and_b32 {s(sT0)}, {s(sHEAD)}, 3
        s_lshl_b32 {s(sT0)}, {s(sT0)}, 11
        s_add_u32 {s(sXo)}, {s(sXo)}, {s(sT0)}
        s_lshl_b32 {s(sT0)}, {s(sTEAM)}, 17
        s_add_u32 {s(sXo)}, {s(sXo)}, {s(sT0)}
        s_add_u32 {s(sXo)}, {s(sXo)}, {s(sNEAR)}
        s_add_u32 {s(sXo)}, {s(sXo)}, {C2_V + w*512}
        s_xor_b32 {s(sXi)}, {s(sXo)}, 0x20000
        s_add_u32 {s(sXr)}, {s(sXi)}, 0xc0000
        s_mov_b32 {s(sSL)}, 0x3f80
        s_mov_b32 {s(sSL+1)}, 0x3f800000''')
        for d, m in enumerate((0x0011, 0x1100, 0x0022, 0x2200, 0xF0F0)):
            mm = m | (m << 16)
            S(f's_mov_b32 {s(sMK+2*d)}, {mm}\ns_mov_b32 {s(sMK+2*d+1)}, {mm}')
    def load_weights(self, S):
        w, plan = self.w, self.plan
        A_L, SRC, SRCO, SRC2, WQ, WO, W2, TQ, TO, T2 = 1, 2, 3, 4, 5, 9, 10, 11, 13, 14
        t0, t1, t2, t3, t4 = 16, 17, 18, 19, 20
        S(f'''
        v_lshrrev_b32 {v(t0)}, 4, v0
        v_and_b32 {v(t1)}, 15, v0
        v_lshlrev_b32 {v(t2)}, 13, {v(t0)}
        v_lshl_add_u32 {v(SRC)}, {v(t1)}, 4, {v(t2)}
        v_mul_u32_u24 {v(t2)}, 1280, {v(t0)}
        v_lshl_add_u32 {v(SRCO)}, {v(t1)}, 4, {v(t2)}
        v_lshrrev_b32 {v(t2)}, 3, v0
        v_mul_u32_u24 {v(t2)}, 1280, {v(t2)}
        v_and_b32 {v(t3)}, 7, v0
        v_lshl_add_u32 {v(SRC2)}, {v(t3)}, 4, {v(t2)}
        v_lshlrev_b32 {v(W2)}, 4, v0
        v_add_u32 {v(A_L)}, {lbase(w)}, {v(W2)}
        v_and_b32 {v(t2)}, 1, {v(t0)}
        v_lshlrev_b32 {v(t3)}, 5, {v(t2)}
        v_xor_b32 {v(WQ)}, {v(W2)}, {v(t3)}
        v_xor_b32 {v(WQ+1)}, 64, {v(WQ)}
        v_xor_b32 {v(WQ+2)}, 0x80, {v(WQ)}
        v_xor_b32 {v(WQ+3)}, 0xc0, {v(WQ)}
        v_lshlrev_b32 {v(t3)}, 6, {v(t2)}
        v_xor_b32 {v(WO)}, {v(W2)}, {v(t3)}
        v_xor_b32 {v(WO)}, {(w & 1)*128}, {v(WO)}
        v_lshrrev_b32 {v(t0)}, 5, v0
        v_bfe_u32 {v(t1)}, v0, 4, 1
        v_bfe_u32 {v(t2)}, v0, 3, 1
        v_bfe_u32 {v(t3)}, v0, 2, 1
        v_and_b32 {v(t4)}, 3, v0
        v_lshlrev_b32 {v(t4)}, 3, {v(t4)}
        v_lshl_add_u32 {v(TQ)}, {v(t0)}, 12, {v(t4)}
        v_lshl_add_u32 {v(TQ)}, {v(t1)}, 10, {v(TQ)}
        v_lshl_add_u32 {v(TQ)}, {v(t2)}, 11, {v(TQ)}
        v_lshl_add_u32 {v(TQ)}, {v(t3)}, 8, {v(TQ)}
        v_lshl_add_u32 {v(TQ)}, {v(t3)}, 5, {v(TQ)}
        v_lshl_add_u32 {v(TQ)}, {v(t1)}, 6, {v(TQ)}
        v_lshl_add_u32 {v(TQ)}, {v(t2)}, 7, {v(TQ)}
        v_xor_b32 {v(TQ)}, {64*w}, {v(TQ)}
        v_xor_b32 {v(TQ+1)}, 32, {v(TQ)}
        v_lshl_add_u32 {v(t4)}, {v(t2)}, 5, {v(t4)}
        v_lshlrev_b32 {v(t2)}, 4, {v(t1)}
        v_lshl_add_u32 {v(t2)}, {v(t0)}, 2, {v(t2)}
        v_add_u32 {v(t2)}, {v(t2)}, {v(t3)}
        v_lshl_add_u32 {v(T2)}, {v(t2)}, 7, {v(t4)}
        v_lshl_add_u32 {v(TO)}, {v(t2)}, 8, {v(t4)}
        v_lshl_add_u32 {v(TO)}, {v(t3)}, 6, {v(TO)}
        v_lshl_add_u32 {v(TO)}, {v(t1)}, 7, {v(TO)}
        v_xor_b32 {v(TO)}, {64*w}, {v(TO)}
        ''')
        srd = {'q': 52, 'k': 56, 'v': 60, 'o': 64}
        for m, nm in (('q', 'Wq'), ('k', 'Wk'), ('v', 'Wv'), ('o', 'Wo')):
            S(f's_load_dwordx2 {s(srd[m], 2)}, s[0:1], {ARG[nm]}')
        S('s_waitcnt lgkmcnt(0)')
        for m in 'qkvo': S(f's_mov_b32 {s(srd[m]+2)}, {640*4096*2}\ns_mov_b32 {s(srd[m]+3)}, 0x20000')
        sB, sBr, sBo, sT = 68, 69, 70, 71
        S(f'''
        s_lshl_b32 {s(sT)}, {s(sHEAD)}, 8
        s_mul_i32 {s(sB)}, {s(sTEAM)}, {320*8192}
        s_sub_u32 {s(sBr)}, {320*8192}, {s(sB)}
        s_add_u32 {s(sB)}, {s(sB)}, {s(sT)}
        s_add_u32 {s(sBr)}, {s(sBr)}, {s(sT)}
        s_mul_i32 {s(sBo)}, {s(sHEAD)}, {128*1280}
        s_mul_i32 {s(sT)}, {s(sTEAM)}, 640
        s_add_u32 {s(sBo)}, {s(sBo)}, {s(sT)}
        ''')
        qkv = [(m, c) for c in (0, 5, 1, 6, 2, 7, 3, 8, 4, 9) for m in ('qkv' if c < 5 else 'qk')]
        wo = [('o', T, hf) for T in range(2) for hf in range(2)] + [('o', 2)]
        O_ = self.opt('O', 1)
        pieces = wo + qkv if O_ == 0 else qkv + wo if O_ == 1 else [x for i in range(5) for x in qkv[5*i:5*i + 5] + [wo[i]]]
        def blocks(p):
            if p[0] != 'o': return [(p[0], p[1], t) for t in range(2)]
            if p[1] < 2: return [('o', 4*p[1] + w, 2*p[2] + t) for t in range(2)]
            return [('o', 8 + w, j) for j in range(4)] if w < 2 else []
        free = list(range(16, 96, 8)); home = {}
        def need(p):
            bl = blocks(p); return sum(plan.loc[b][0] == 'L' for b in bl) + max(0, 2 - len(bl))
        def issue(p):
            h = [plan.loc[b][1] if plan.loc[b][0] == 'R' else free.pop(0) for b in blocks(p)]
            while len(h) < 2: h.append(free.pop(0))
            home[p] = h
            for i in range(4):
                if len(p) == 3: off, base, ad = (64*p[2] + 16*w + 4*i)*1280 + p[1]*256, sBo, SRCO
                elif p[0] == 'o': off, base, ad = (32*w + 8*i)*1280 + 512, sBo, SRC2
                else: off, base, ad = (64*(p[1] % 5) + 16*w + 4*i)*8192, sB if p[1] < 5 else sBr, SRC
                S(f's_add_u32 {s(sT)}, {s(base)}, {off}')
                S(f'buffer_load_dwordx4 {r(h[i >> 1] + 4*(i & 1), 4)}, {v(ad)}, {s(srd[p[0]], 4)}, {s(sT)} offen')
        DEPTH = self.opt('Q', 6)
        nxt = [0]
        def fill(k):
            while nxt[0] < len(pieces) and nxt[0] < k + DEPTH and need(pieces[nxt[0]]) <= len(free):
                issue(pieces[nxt[0]]); nxt[0] += 1
        fill(0)
        for k, p in enumerate(pieces):
            h = home[p]
            for i in range(4):
                ad = WO if len(p) == 3 else W2 if p[0] == 'o' else WQ + i
                S(f'ds_write_b128 {v(ad)}, {r(h[i >> 1] + 4*(i & 1), 4)} offset:{w*4096 + i*1024}')
            S.wait(lg=0); S('s_barrier')
            for t, b in enumerate(blocks(p)):
                for D in range(4):
                    if len(p) == 3: ad, off = TO, (32*t + 8*(D >> 1) + 2*(D & 1)) * 256
                    elif p[0] == 'o': ad, off = T2, (32*t + 8*(D >> 1) + 2*(D & 1)) * 128 + 64*w
                    else: ad, off = TQ + t, (32*(D >> 1) + 2*(D & 1)) * 256
                    S(f'ds_read_b64_tr_b16 {r(h[t] + 2*D, 2)}, {v(ad)} offset:{off}')
            S.wait(lg=0); S('s_barrier')
            for t, b in enumerate(blocks(p)):
                kind, i = plan.loc[b]
                if kind == 'L':
                    for hh in range(2): S(f'ds_write_b128 {v(A_L)}, {v(h[t] + 4*hh, 4)} offset:{i*2048 + hh*1024}')
            free.extend(x for x in h if x < RES0)
            fill(k + 1)
        S.wait(vm=0, lg=0)
    def lane_consts(self, S):
        w = self.w
        S(f'''
        v_and_b32 v16, 15, v0
        v_lshrrev_b32 v17, 4, v0
        v_and_b32 v18, 1, v16
        v_bfe_u32 v19, v16, 1, 1
        v_mov_b32 v20, 0xaaaa
        v_mul_u32_u24 v18, v18, v20
        v_mul_u32_u24 v19, v19, v20
        v_lshl_add_u32 v18, v19, 16, v18
        v_add_u32 {v(IDX)}, 0x44444444, v18
        v_lshrrev_b32 v18, 1, v17
        v_lshlrev_b32 v18, 6, v18
        v_lshlrev_b32 v19, 3, v16
        v_xor_b32 v18, v18, v19
        v_lshl_add_u32 {v(PX)}, v17, 7, v18
        v_and_b32 v18, 3, v0
        v_lshrrev_b32 v19, 2, v0
        v_lshlrev_b32 v19, 3, v19
        v_lshrrev_b32 v20, 1, v18
        v_lshlrev_b32 v20, 6, v20
        v_xor_b32 v19, v19, v20
        v_lshl_add_u32 {v(PT)}, v18, 7, v19
        v_and_b32 v18, 7, v16
        v_and_b32 v19, 61, v0
        v_lshlrev_b32 {v(PR)}, 4, v19
        v_lshlrev_b32 v19, 12, v17
        v_lshl_add_u32 {v(PP)}, v16, 3, v19
        v_and_b32 v19, 1, v17
        v_lshlrev_b32 v19, 5, v19
        v_lshl_add_u32 v19, v18, 2, v19
        v_lshrrev_b32 v20, 1, v17
        v_lshl_add_u32 {v(PM)}, v20, 8, v19
        v_lshlrev_b32 {v(P16)}, 4, v0
        v_add_u32 {v(PL)}, {lbase(w)}, {v(P16)}
        ''')
        if w not in RED: S(f'v_mov_b32 {v(FLG)}, 0')
    def init_rings(self, S):
        w, sc = self.w, self.sc
        zero(S, M, 4)
        S(f'v_mov_b64 {v(RV,2)}, -1')
        for slot in range(4): S(f's_add_u32 {s(sT0)}, {s(sXi)}, {slot*0x40000}\nbuffer_store_dwordx2 {v(RV,2)}, {v(PX)}, {SRD}, {s(sT0)} offen sc1')
        if w not in RED: return
        make_srd(S, WD, 'mem0', 10240)
        S(f'''
        s_add_u32 {s(sT0)}, {s(sHEAD)}, {32*RED[w]}
        s_min_u32 {s(sT0)}, {s(sT0)}, 39
        s_and_b32 {s(sT1)}, {s(sT0)}, 3
        s_mul_i32 {s(sT1)}, {s(sT1)}, 2560
        s_lshr_b32 {s(sT0)}, {s(sT0)}, 2
        s_lshl_b32 {s(sT0)}, {s(sT0)}, 6
        s_add_u32 {s(sT0)}, {s(sT0)}, {s(sT1)}
        s_mul_i32 {s(sT1)}, {s(sTEAM)}, 640
        s_add_u32 {s(sT0)}, {s(sT0)}, {s(sT1)}
        v_bfe_u32 {v(X)}, {v(PM)}, 5, 1
        v_mul_u32_u24 {v(X)}, 1280, {v(X)}
        v_and_b32 {v(X+1)}, 31, {v(PM)}
        v_add_u32 {v(X)}, {v(X)}, {v(X+1)}
        v_lshrrev_b32 {v(X+1)}, 8, {v(PM)}
        v_lshl_add_u32 {v(X)}, {v(X+1)}, 5, {v(X)}
        buffer_load_dword {v(X+2)}, {v(X)}, {s(WD,4)}, {s(sT0)} offen
        v_mov_b32 {v(M+4)}, -1
        ''')
        for i in range(4): S(f'buffer_store_dwordx4 {v(M,4)}, {v(P16)}, {SRD}, {s(sUpoll)} offen offset:{i*1024}{sc}')
        for base, pol in ((sMbase, sc), (sRbase, ' sc1')):
            for slot in range(1, 4):
                S(f's_add_u32 {s(sT0)}, {s(base)}, {slot*MB}')
                S(f'buffer_store_dword {v(M+4)}, {v(PM)}, {SRD}, {s(sT0)} offen{pol}')
            S(f'buffer_store_dword {v(X+2)}, {v(PM)}, {SRD}, {s(base)} offen{pol}')
    def nextKV(self, n=1):
        if 'k' in self.ko: n = 0
        return f's_add_u32 {s(sKVL)}, {s(sKVL)}, {n*32*KVB}\n{swz(sKN, sKVL)}\ns_add_u32 {s(sVV)}, {s(sKN)}, 16384'
    def ldK(self):
        return [f'buffer_load_dwordx4 {v(ZC + 4*j,4)}, {v(P16)}, {SRD}, {s((sKN, sVV)[j >> 1])} offen offset:{(j & 1)*1024} sc1' for j in range(4)]
    def idle(self):
        P = self.plan
        o = [mov2(K + 2*j, ZC + 2*j) for j in range(8)]
        for i, (sl, gap) in P.p1_nr.items():
            if gap is None: o += P.fetch(P.p1[i], sl)
        return o + [z2(X + 2*i) for i in range(12)]
    def enter(self, S):
        S.gap([self.ldK()])
        S(self.nextKV())

    def body(self, S, O):
        w, p, sc, ko, P = self.w, self.p, self.sc, self.ko, self.plan
        self.nst = 0
        co = P.co; NP = len(P.p1); nt = len(P.tiles)
        hd = 'd' * ('h' in ko)
        def br(lab_):
            def f(T): T(f's_cbranch_vccnz {p}_{lab_}{hd}'); T.label(f'{p}_{lab_}d')
            return f
        def bar(tag):
            def f(T): T.wait(tag=tag); T('s_barrier')
            return f
        mark = lambda c: S.raw('; @' + c)
        acc = {('q', 0): X, ('q', 1): X + 4, ('k', 0): X + 8, ('k', 1): X + 12, ('v', 0): VA, ('v', 1): VA + 4}
        rdA = lambda c, buf: f'ds_read_b128 {v(buf,4)}, {v(P16)} offset:{c*1024}'
        ldM = lambda so, so4, b, b4: [f'buffer_load_dwordx4 {v(b,4)}, {v(P16)}, {SRD}, {s(so)} offen sc1', f'buffer_load_dwordx4 {v(b4,4)}, {v(P16)}, {SRD}, {s(so4)} offen sc1']
        wrM = lambda h, b: (f'ds_write_b128 {v(P16)}, {v(b,4)} offset:{(5*h + w)*1024}', 'mw')
        ckM = lambda b, b4: [f'v_max3_u32 {v(RV)}, {v(b)}, {v(b+1)}, {v(b+2)}', f'v_max3_u32 {v(RV)}, {v(RV)}, {v(b+3)}, {v(b4)}',
                             f'v_max3_u32 {v(RV)}, {v(RV)}, {v(b4+1)}, {v(b4+2)}', f'v_max_u32 {v(RV)}, {v(RV)}, {v(b4+3)}', f'v_cmp_eq_u32 vcc, -1, {v(RV)}']
        fill = {i: [] for i in range(NP)}
        for i, (slot, gap) in P.p1_nr.items():
            if gap is not None:
                f = P.fetch(P.p1[i], slot); fill[gap[0]].append(f[0]); fill[gap[1]].append(f[1])
        oth = (Y, Y + 4, ZB)
        abuf = {co[5]: RB, co[6]: ZB + 4}
        for j in range(3): abuf[co[2 + j]] = abuf[co[7 + j]] = oth[j]
        S.label(f'{p}_top')
        fl = w == FLGW and 'F' in ko
        ldF = lambda t_: [f'v_and_b32 {v(t_)}, 0x30, {v(P16)}', f'buffer_load_dword {v(FLG)}, {v(t_)}, {SRD}, {s(sFLG)} offen sc1']
        ldR = ldM(sRin, sR4, RB, ZB + 4)
        RD = self.opt('D', 0); HB = self.opt('H', 5)
        ring = lambda x: [f's_add_u32 {s(x)}, {s(x)}, {MB}', f's_bitset0_b32 {s(x)}, 16']
        def head(T, b):
            self.stamp(T)
            sal = ring(sMin) + ring(sM4) + ring(sMout) + ring(sRout)
            if RD == 0: T(ldR[0])
            for i in range(12):
                m, c, t = P.p1[i]
                T(SMF(acc[m, t], b + 4*(c == 4), P.reg(P.p1, P.p1_nr, i)))
                g = [sal.pop(0)] if i >= 2 and i != HB and sal else []
                if i == 0: g.append(wrM(0, b))
                if RD and i == RD: g.append(ldR[0])
                if i == RD + 1: g.append(ldR[1])
                if i == HB: g.append(bar('mw'))
                if HB <= i < HB + 3: g.append(rdA(co[2 + i - HB], oth[i - HB]))
                T.gap(g)
            assert not sal
        sets = (M, ZA)
        ldA = lambda j: ldM(sMin, sM4, sets[j], sets[j] + 4)
        ckA = lambda j: ckM(sets[j], sets[j] + 4)
        work = self.idle(); n1 = self.opt('I', 26)
        S.gap([ldA(0) + work[:n1] + ldA(1) + work[n1:]]); S.force_wait(lg=0)
        ob = Stream(); ob.label(f'{p}_pa'); ob.gap([ldA(1)]); ob(f's_branch {p}_pb'); O.append(ob.text())
        S.label(f'{p}_pb')
        S.gap([ckA(0)])
        S(f's_cbranch_vccnz {p}_pc{hd}'); S.label(f'{p}_pcd')
        T = Stream(S.state()); T.label(f'{p}_pc'); T.gap([ldA(0) + ckA(1)]); T(f's_cbranch_vccz {p}_pa1')
        if self.stamps: T('s_add_u32 s90, s90, 1')
        self.budget(T, f'{p}_pa'); T.label(f'{p}_pa1'); head(T, ZA); T(f's_branch {p}_pad'); O.append(T.text())
        self.nst = 0
        head(S, M)
        S.label(f'{p}_pad'); mark('a')
        allr = {('v', i) for b in sets for i in range(b, b + 8)}
        S.vm = [(allr if e[0] & allr else e[0], e[1]) for e in S.vm]
        GR = self.opt('G', 26)
        ck = ckM(RB, ZB + 4)
        fill[GR] += [wrM(1, RB), ck[0]]; fill[GR + 1] += [ck[1:]]
        fill[min(GR + 3, 29)].append(br('rr'))
        GB = GR + 5
        fill[GB].insert(0, bar('mw'))
        if self.stamps: fill[GB].insert(1, self.stamp)
        for j in range(3): fill[GB + j].append(rdA(co[7 + j], oth[j]))
        ob = Stream(); ob.label(f'{p}_rr')
        if self.stamps: ob('s_add_u32 s91, s91, 1')
        ob.gap([ldR + [wrM(1, RB)] + ck]); ob.force_wait(lg=0); ob(f's_cbranch_vccz {p}_rrd'); self.budget(ob, f'{p}_rr', f'{p}_rrd'); O.append(ob.text())
        for j, x in enumerate(ring(sRin) + ring(sR4)): fill[(30, 34, 35, 36)[j]].append(x)
        vs = [f'v_add_f32 {v(VA+i)}, {v(VA+2*i)}, {v(VA+2*i+1)}' for i in range(4)]
        cvv = lambda a_: [f'v_cvt_pk_bf16_f32 {v(VP+i)}, {v(a_+2*i)}, {v(a_+2*i+1)}' for i in range(2)]
        fill[18] += vs[:2]; fill[19] += [cvv(VA)[0], vs[2]]; fill[20] += [vs[3], cvv(VA)[1]]
        fill[21].append(f'buffer_store_dwordx2 {v(VP,2)}, {v(PX)}, {SRD}, {s(sXo)} offen sc1')
        NEG = VA + 4
        fill[22] += [f'v_mov_b64 {v(NEG,2)}, -1']
        fill[28].append(f'buffer_store_dwordx2 {v(NEG,2)}, {v(PX)}, {SRD}, {s(sXr)} offen sc1')
        pw = {sl: P.fetch(P.wo[i], sl) for i, (sl, g) in P.wo_nr.items()}
        stF = f'buffer_store_dword {v(NEG+2)}, off, {SRD}, {s(sFKM)} sc1'
        if w in RED:
            fill[23] += [f's_xor_b32 {s(sT0)}, {s(sRout)}, {2*MB}']; fill[24] += [f's_xor_b32 {s(sT1)}, {s(sMout)}, {2*MB}']
            fill[35] += [f'buffer_store_dword {v(NEG)}, {v(PM)}, {SRD}, {s(sT1)} offen{sc}']
        if w == 3: fill[23].append(f'v_mov_b32 {v(NEG+2)}, {s(sSTEP)}')
        if fl: fill[23].append(ldF(NEG + 2)[0])
        slow = [f'buffer_store_dword {v(NEG)}, {v(PM)}, {SRD}, {s(sT0)} offen sc1' if w in RED else stF if w == 3 else ldF(NEG + 2)[1] if fl else None]
        GV = self.opt('V', 3) + 36
        ldRV = f'buffer_load_dwordx2 {v(RV,2)}, {v(PX)}, {SRD}, {s(sXi)} offen sc1'
        fill[GV].append(ldRV)
        kv = self.ldK()
        post = lambda a_, d: [f'v_add_f32 {v(a_)}, {v(a_)}, {v(a_+1)}', f'v_add_f32 {v(a_+2)}, {v(a_+2)}, {v(a_+3)}', f'v_cvt_pk_bf16_f32 {v(d)}, {v(a_)}, {v(a_+2)}']
        qp = post(X, X) + post(X + 4, X + 1); kp = post(X + 8, X + 8) + post(X + 12, X + 9)
        wrq = lambda m: (f'ds_write_b64 {v(PX)}, {v(X + 8*m, 2)} offset:{L_QK + 2048*m + 512*w}', 'qk')
        tr = [f'ds_read_b64_tr_b16 {v(X + 8*m + 2*j, 2)}, {v(PT)} offset:{L_QK + 2048*m + j*512}' for m in range(2) for j in range(4)]
        QE = max(i for i, b in enumerate(P.p1) if b[0] == 'q')
        for i in range(3): fill[QE + 1 + i] += qp[2*i:2*i + 2]
        fill[QE + 4].append(wrq(0))
        kvl = []
        if 'W' in ko: kvl, kv = kv, []
        g = GV + 2 + (w & 1)
        while kv and g < NP - 1:
            if g == QE + 4: g += 1
            fill[g].append(kv.pop(0)); g += 3
        ONES = RB
        lastRB = max(i for i, b in enumerate(P.p1) if b[1] == co[5])
        ones = [f'v_mov_b32 {v(ONES+i)}, 0x3f803f80' for i in range(4)]
        for g in range(lastRB, NP - 1):
            if ones and not QE < g < QE + 5: fill[g].append(ones.pop(0))
        fill[NP - 1] += [bar('qk'), tr[:4]]
        for i in range(12, NP):
            m, c, t = P.p1[i]
            S(SMF(acc[m, t], abuf[c], P.reg(P.p1, P.p1_nr, i)))
            if i == NP - 1: self.stamp(S)
            S.gap(fill[i])
            if i in (17, 25, 33, 41, 48, 49): mark({17: 'b', 25: 'c', 33: 'd', 41: 'e', 48: 'f', 49: 'g'}[i])
        dppadd = lambda d, a_, b: f'v_add_f32_dpp {v(d)}, {v(a_)}, {v(b)} quad_perm:[2,3,0,1] row_mask:0xf bank_mask:0xf'
        dup = lambda d, a_: f'v_mov_b32_dpp {v(d)}, {v(a_)} quad_perm:[0,1,0,1] row_mask:0xf bank_mask:0xf'
        half = lambda x: None if 'p' in ko else [f's_mov_b64 exec, {s(sHALF,2)}', x, 's_mov_b64 exec, -1']
        pubv = half(f'buffer_store_dwordx2 {v(VP,2)}, {v(PX)}, {SRD}, {s(sKM)} offen offset:{2048 + w*512} sc1')
        pubk = half(f'buffer_store_dwordx4 {v(X + 8 + 4*(w >> 1), 4)}, {v(P16)}, {SRD}, {s(sKM)} offen offset:{(w >> 1)*1024} sc1') if w & 1 else None
        expX = lambda t_, pad: [f'v_exp_f32 {v(t_)}, {v(M)}', f'v_exp_f32 {v(t_+1)}, {v(M+1)}'] + pad + [f'v_cvt_pk_bf16_f32 {v(t_)}, {v(t_)}, {v(t_+1)}',
                           (f'ds_write_b32 {v(P16)}, {v(t_)} offset:{L_PX + 4*w}', 'pw')]
        expM = [f'v_exp_f32 {v(M+4)}, {v(M+2)}', f'v_exp_f32 {v(M+5)}, {v(M+3)}', f'v_mov_b32 {v(X+5)}, 0', f'v_cvt_pk_bf16_f32 {v(M+4)}, {v(M+4)}, {v(M+5)}',
                f'v_mov_b32 {v(X+6)}, 0', dup(X + 4, M + 4), dup(X + 7, M + 4)]
        rdP = f'ds_read_b128 {v(X,4)}, {v(PR)} offset:{L_PX}'
        wacc = [ZB, ZB + 4, X + 12]
        pop = lambda q: q.pop(0) if q else None
        S.gap([kp + [wrq(1)]]); mark('h')
        S(MF32(M, K, X)); S.gap([pop(kv), z2(ZB)])
        S(MF32(M, K + 4, X + 4, M)); S.gap([z2(ZB + 2), z2(ZB + 4)] + ones)
        bar('qk')(S); S.gap([tr[4:]]); mark('i')
        S.gap([[dppadd(M, M + 2, M), dppadd(M + 1, M + 3, M + 1)] + expX(M + 2, [z2(ZB + 6)])]); mark('j')
        S(MF32(M + 4, X + 8, X)); S.gap([pop(kv)])
        S(MF32(M + 4, X + 12, X + 4, M + 4)); S.gap([pop(kv)] + slow)
        assert not kv
        bar('pw')(S); self.stamp(S); S(rdP); S.gap([pw[K]]); mark('k')
        mp = [dppadd(M + 4, M + 6, M + 4), dppadd(M + 5, M + 7, M + 5), f'v_mul_f32 {v(M+2)}, {s(sQS)}, {v(M+4)}', f'v_mul_f32 {v(M+3)}, {s(sQS)}, {v(M+5)}'] + expM
        S.gap([mp[:9], pubk]); mark('l')
        TV = M + 4
        addv = [f'v_dot2_f32_bf16 {v(TV+i)}, {v(RV + (i >> 1))}, {s(sSL + (i & 1))}, {v(VA+i)}' for i in range(4)]
        if 'u' in ko: addv = [(f'v_lshlrev_b32 {v(TV+i)}, 16, {v(RV + (i >> 1))}', f'v_and_b32 {v(TV+i)}, 0xffff0000, {v(RV + (i >> 1))}')[i & 1] + f'\nv_add_f32 {v(TV+i)}, {v(TV+i)}, {v(VA+i)}' for i in range(4)]
        ckV = [f'v_max_u32 {v(NEG+3)}, {v(RV)}, {v(RV+1)}', f'v_cmp_eq_u32 vcc, -1, {v(NEG+3)}']
        ob = Stream(); ob.label(f'{p}_rv')
        if self.stamps: ob('s_add_u32 s87, s87, 1')
        ob(ldRV); ob.force_wait(vm=0); ob.gap([addv + ckV + cvv(TV)]); ob(f's_cbranch_vccz {p}_rvd'); self.budget(ob, f'{p}_rv', f'{p}_rvd'); O.append(ob.text())
        LL = X + 8
        def pv(T, first):
            f = (lambda x: x) if first else (lambda x: None)
            T(MF32(LL, ONES, X)); T.gap([f(mp[9:11])])
            T(MF32(Y, V, X)); T.gap([f(ckV + addv[:1])])
            T(MF16(LL, ONES, X + 4, LL)); T.gap([f(addv[1:])])
            T(MF32(Y + 4, V + 4, X)); T.gap([f(cvv(TV)), f(br('rv'))])
            if first: T('s_nop 0')
            T(MF16(Y, VP, X + 4, Y)); T(f'v_rcp_f32 {v(LL+1)}, {v(LL)}')
            T(MF16(Y + 4, VP, X + 6, Y + 4)); T.gap([f(pubv)])
            if first: T(f'v_subrev_u32 {v(LL+2)}, {s(sLo)}, {v(LL)}\nv_cmp_le_u32 vcc, {s(sRng)}, {v(LL+2)}')
        OP = M + 4
        def norm(T):
            for t in range(2):
                for i in range(4): T(f'v_mul_f32 {v(Y + 4*t + i)}, {v(LL+1)}, {v(Y + 4*t + i)}')
                for i in range(2): T(f'v_cvt_pk_bf16_f32 {v(OP + 2*t + i)}, {v(Y + 4*t + 2*i)}, {v(Y + 4*t + 2*i + 1)}')
            T(f'ds_write_b128 {v(P16)}, {v(OP,4)} offset:{L_O + w*1024}', tag='ow')
        pv(S, True); mark('m'); norm(S); br('fb')(S); mark('n')
        self.stamp(S)
        fb = Stream(); fb.label(f'{p}_fb'); fb.force_wait(lg=0); fb('s_nop 11')
        fb('s_barrier')
        fb(f'v_max_f32 {v(X)}, {v(M)}, {v(M+1)}\nv_max3_f32 {v(X)}, {v(X)}, {v(M+2)}, {v(M+3)}')
        fb(f'ds_write_b32 {v(P16)}, {v(X)} offset:{L_MX + 4*w}')
        fb.wait(lg=0); fb('s_barrier')
        fb(f'v_and_b32 {v(Y)}, 0xff, {v(P16)}')
        for g in range(4): fb(f'ds_read_b128 {v(X + 4*g, 4)}, {v(Y)} offset:{L_MX + g*256}')
        fb(f'v_max_f32 {v(Y)}, {v(X)}, {v(X+1)}')
        for i in range(1, 8): fb(f'v_max3_f32 {v(Y)}, {v(Y)}, {v(X+2*i)}, {v(X+2*i+1)}')
        for i in range(4): fb(f'v_sub_f32 {v(M+i)}, {v(M+i)}, {v(Y)}')
        fb.gap([expX(Y, []) + expM])
        fb.wait(lg=0); fb('s_barrier')
        fb(rdP); pv(fb, False); norm(fb); fb.force_wait(lg=0); fb('s_nop 11'); fb(f's_branch {p}_fbd')
        O.append(fb.text())
        ofr = {w: OP}
        for j in (1, 2, 3): ofr[w ^ j] = X + 4*(j - 1)
        WB = lambda i: P.reg(P.wo, P.wo_nr, i)
        S(SMF(wacc[0], OP, WB(0), wo=True)); S.gap([pw[V][0], z2(X + 12) if nt == 3 else None])
        S(SMF(wacc[1], OP, WB(1), wo=True)); S.gap([pw[V][1], z2(X + 14) if nt == 3 else None])
        S.gap([pop(kvl)])
        S.wait(tag='ow'); S('s_barrier')
        for j in (1, 2, 3): S(f'ds_read_b128 {v(ofr[w ^ j],4)}, {v(P16)} offset:{L_O + (w ^ j)*1024}')
        S.gap([pop(kvl)]); mark('o')
        if nt == 3: S(SMF(wacc[2], OP, WB(2), wo=True))
        S(f's_cmp_eq_u32 {s(sSTEP)}, {s(sNST)}\ns_cbranch_scc1 {p}_exit')
        def put(i):
            ac = wacc[i]
            return [f'v_cvt_pk_bf16_f32 {v(ac)}, {v(ac)}, {v(ac+1)}', f'v_and_or_b32 {v(ac)}, {v(ac)}, -2, {s(sPar)}',
                    f'v_cvt_pk_bf16_f32 {v(ac+1)}, {v(ac+2)}, {v(ac+3)}',
                    (f'buffer_store_dwordx2 {v(ac,2)}, {v(PP)}, {SRD}, {s((sPst, sT0, sT1)[i])} offen{sc}', f'st{i}')]
        q = []
        early = [f's_mov_b32 {s(sXr)}, {s(sXi)}', f's_add_u32 {s(sT0)}, {s(sPst)}, 65536', f's_add_u32 {s(sT1)}, {s(sPst)}, 131072']
        for i in range(nt):
            for j in (1, 2, 3):
                S(SMF(wacc[i], ofr[w ^ j], WB(nt + 3*i + j - 1), wo=True))
                if i == 0: S(early[j - 1])
                if kvl and (3*i + j + w) % 2 == 0: S(kvl.pop(0))
                if i and j == 2: q += put(i - 1)
                if q and not (i == nt - 1 and j == 3):
                    g = [q.pop(0)]
                    if isinstance(g[0], tuple) and q: g.append(q.pop(0))
                    S.gap([g])
        S.gap([q + put(nt - 1)]); mark('p')
        self.stamp(S)
        S(f's_add_u32 {s(sKML)}, {s(sKML)}, {16*16384}\n{swz(sKM, sKML)}\ns_add_u32 {s(sSTEP)}, {s(sSTEP)}, 1\ns_add_u32 {s(sXo)}, {s(sXo)}, 0x40000\ns_and_b32 {s(sXo)}, {s(sXo)}, 0xfffff\ns_or_b32 {s(sXo)}, {s(sXo)}, {C2_V}\ns_xor_b32 {s(sXi)}, {s(sXo)}, 0x20000')
        S(self.nextKV())
        E = self.opt('E', 0)
        if w in RED:
            if RED[w]:
                S(f's_cmp_ge_u32 {s(sHEAD)}, 8\ns_cbranch_scc1 {p}_nored')
                ob = Stream(); ob.label(f'{p}_nored'); ob.force_wait(vm=0); ob(f's_branch {p}_redd'); O.append(ob.text())
            SEL, RA = M, M + 4
            S(f'v_mov_b32 {v(RA)}, 0x3f80\nv_cndmask_b32 {v(RA)}, {v(RA)}, 1.0, {s(sMK+8,2)}')
            for d in range(4): S(f'v_cndmask_b32 {v(SEL+d)}, 0, {v(RA)}, {s(sMK+2*d,2)}')
            S.wait(tag='st%d' % self.opt('RS'[RED[w]], nt - 1))
            self.stamp(S)
            NS = self.opt('B', 2)
            sets = (X, K, VA)[:NS]
            ld1 = lambda b: [f'buffer_load_dwordx4 {v(b + 4*i,4)}, {v(P16)}, {SRD}, {s(sUpoll)} offen offset:{i*1024} sc1' for i in range(4)]
            def red1(T, b):
                T.hoist = False
                for i in range(4):
                    T(MF32(RA, SEL, b + 4*i, RA if i else None))
                    T(f'v_bitop3_b32 {v(b + 4*i + 1)}, {v(b + 4*i)}, {v(b + 4*i + 2)}, {s(sPar)} bitop3:0x7e')
                    if i == 2: T(f'v_or3_b32 {v(b+1)}, {v(b+1)}, {v(b+5)}, {v(b+9)}\nv_and_b32 {v(b+1)}, 1, {v(b+1)}')
                T(f'v_and_or_b32 {v(b+1)}, {v(b+13)}, 1, {v(b+1)}\nv_cmp_ne_u32 vcc, 0, {v(b+1)}')
                T(f'''v_add_f32_dpp {v(RA+2)}, {v(RA)}, {v(RA)} row_ror:8 row_mask:0xf bank_mask:0xf
                v_add_f32_dpp {v(RA+3)}, {v(RA+1)}, {v(RA+1)} row_ror:8 row_mask:0xf bank_mask:0xf
                v_cvt_pk_bf16_f32 {v(VP)}, {v(RA+2)}, {v(RA+3)}''')
                T.hoist = True
            for j in range(NS):
                S.gap([ld1(sets[j])])
                if j < NS - 1:
                    for _ in range(self.opt('J', 1)): S(f'ds_read_b128 {v(RB,4)}, {v(P16)}'); S.wait(lg=0)
            red1(S, sets[0]); st1 = S.state(); br('r1')(S)
            T = Stream(st1); T.label(f'{p}_r1')
            for j in range(NS):
                if self.stamps: T('s_add_u32 s89, s89, 1')
                for x in ld1(sets[j]): T(x, tag='junk')
                red1(T, sets[(j + 1) % NS]); T(f's_cbranch_vccz {p}_r1d')
            self.budget(T, f'{p}_r1', f'{p}_r1d'); O.append(T.text())
            S(f'buffer_store_dword {v(VP)}, {v(PM)}, {SRD}, {s(sMout)} offen{sc}\nbuffer_store_dword {v(VP)}, {v(PM)}, {SRD}, {s(sRout)} offen sc1')
            self.stamp(S)
            if RED[w]: S.label(f'{p}_redd')
        else:
            S.wait(vm=0); self.stamp(S); self.stamp(S)
            if fl:
                S(f's_add_u32 {s(sT0)}, {s(sSTEP)}, 2\ns_min_u32 {s(sT0)}, {s(sT0)}, 64\nv_cmp_gt_u32 vcc, {s(sT0)}, {v(FLG)}')
                br('kv')(S)
                ob = Stream(); ob.label(f'{p}_kv'); ob.gap([ldF(RV)]); ob(f'v_cmp_gt_u32 vcc, {s(sT0)}, {v(FLG)}\ns_cbranch_vccz {p}_kvd')
                self.budget(ob, f'{p}_kv', f'{p}_kvd'); O.append(ob.text())
        S(f's_xor_b32 {s(sPar)}, {s(sPar)}, 1')
        if self.stamps:
            S.force_wait(lg=0)
            S(f's_mov_b32 m0, {s(sSTEP)}')
            for i in range(8): S(f'v_writelane_b32 {v(248 + i)}, {s(sST + 2*i)}, m0')
        if w in RED: S.force_wait(vm=2)
        if w == 2 and E == 1: S.wait(vm=1)
        if E < 2: S('s_barrier')
        S(f's_branch {p}_top')
        S.raw(f'{p}_exit:\n    s_waitcnt vmcnt(0) lgkmcnt(0)\n    s_barrier')
        if w == 3: S.raw(f'    s_add_u32 {s(sSTEP)}, {s(sSTEP)}, 1\n    v_mov_b32 {v(NEG+2)}, {s(sSTEP)}\n    {stF}')

    def loop_text(self):
        S1 = Stream(); self.body(S1, [])
        O = []
        S2 = Stream(S1.state()); self.body(S2, O)
        assert S1.vm == S2.vm and S1.lg == S2.lg, (S1.vm, S2.vm)
        t = S2.text()
        if self.stamps.startswith('t'):
            lo, st = map(int, self.stamps[1:].split('x'))
            out = []; n = -1; k = 0
            for l in t.split('\n'):
                if l == f'{self.p}_pad:': n = 0
                if n >= 0 and l.startswith('    '):
                    if n >= lo and (n - lo) % st == 0 and k < 8: out.append(f'    s_memtime {s(sST + 2*k, 2)}'); k += 1
                    n += 1
                out.append(l)
            t = '\n'.join(out)
        return t, ''.join(O)
```

```python
from sched import Stream
from asmlib import v, a, s, r
from layout import *
WS = 4; SRD = s(WS, 4)
sTEAM, sMEM, sWAVE, sBUD = 3, 12, 13, 15
DBG = 72
OPT = dict(postwait=2, qwait=2)
_n = [0]
def lab(x):
    _n[0] += 1
    return f'L{x}{_n[0]}'
def MF32(d, A, B, C=None):
    return f'v_mfma_f32_16x16x32_bf16 {r(d,4)}, {r(A,4)}, {r(B,4)}, {r(C,4) if C is not None else 0}'
def MF16(d, A, B, C=None):
    return f'v_mfma_f32_16x16x16_bf16 {r(d,4)}, {r(A,2)}, {r(B,2)}, {r(C,4) if C is not None else 0}'
def make_srd(S, reg, arg, nbytes):
    S(f's_load_dwordx2 {s(reg,2)}, s[0:1], {ARG[arg]}\ns_waitcnt lgkmcnt(0)\ns_mov_b32 {s(reg+2)}, {nbytes}\ns_mov_b32 {s(reg+3)}, 0x20000')
def spin_tail(S, again):
    S(f's_sub_u32 {s(sBUD)}, {s(sBUD)}, 1\ns_cbranch_scc0 {again}\ns_mov_b32 {s(sBUD)}, 0')
def wait_flags(S, tmp, n, vaddr, soff, target, lanes=64, srd=SRD, off=0):
    L = lab('wf'); D = L + 'd'
    ld = {1: 'dword', 2: 'dwordx2', 4: 'dwordx4'}[n]
    if lanes < 64: S(f's_mov_b32 exec_lo, {hex((1 << min(lanes, 32)) - 1)}\ns_mov_b32 exec_hi, {hex((1 << max(lanes - 32, 0)) - 1)}')
    S.wait(vm=0)
    S.label(L)
    S(f'buffer_load_{ld} {v(tmp, n)}, {v(vaddr)}, {srd}, {soff} offen offset:{off} sc1')
    S.force_wait(vm=0)
    if n == 2: S(f'v_min_u32 {v(tmp)}, {v(tmp)}, {v(tmp+1)}')
    if n == 4: S(f'v_min3_u32 {v(tmp)}, {v(tmp)}, {v(tmp+1)}, {v(tmp+2)}\nv_min_u32 {v(tmp)}, {v(tmp)}, {v(tmp+3)}')
    S(f'v_cmp_gt_u32 vcc, {target}, {v(tmp)}\ns_cbranch_vccz {D}')
    spin_tail(S, L)
    S.label(D)
    if lanes < 64: S('s_mov_b64 exec, -1')
def set_flag(S, tmp, soff, val, sc=' sc1', off=0):
    S(f'v_mov_b32 {v(tmp)}, {val}\nv_mov_b32 {v(tmp+1)}, 0\ns_mov_b64 exec, 1')
    S(f'buffer_store_dword {v(tmp)}, {v(tmp+1)}, {SRD}, {soff} offen offset:{off}{sc}')
    S('s_mov_b64 exec, -1')
def wait_init(S, tmp, off=DBG_INIT, n=2):
    S(f'v_mov_b32 {v(tmp+1)}, 0')
    wait_flags(S, tmp, 1, tmp + 1, 0, n, lanes=1, srd=s(DBG, 4), off=off)
def xsum(S, x, t, op='add', row8=False, row421=False):
    o = f'v_{op}_f32'
    if row421:
        for k in (1, 2, 4): S(f'{o}_dpp {v(x)}, {v(x)}, {v(x)} row_ror:{k} row_mask:0xf bank_mask:0xf')
    if row8: S(f'{o}_dpp {v(x)}, {v(x)}, {v(x)} row_ror:8 row_mask:0xf bank_mask:0xf')
    for sw in ('16', '32'):
        S(f'v_mov_b32 {v(t)}, {v(x)}\nv_permlane{sw}_swap_b32 {v(x)}, {v(t)}\n{o} {v(x)}, {v(x)}, {v(t)}')
def unpack(S, lo, hi, src):
    S(f'v_and_b32 {v(hi)}, 0xffff0000, {v(src)}\nv_lshlrev_b32 {v(lo)}, 16, {v(src)}')
LOG2E = f2u(1.4426950408889634)

def tstamp(S, k, tmp=8, cyc=False, idx=None):
    S.force_wait(lg=0)
    S(f'''{'s_memtime' if cyc else 's_memrealtime'} s[70:71]
    s_waitcnt lgkmcnt(0)
    s_lshl_b32 s71, {s(sTEAM)}, 5
    s_add_u32 s71, s71, {s(sMEM)}
    s_lshl_b32 s71, s71, 2
    s_add_u32 s71, s71, {s(sWAVE)}
    s_lshl_b32 s71, s71, 8
    s_add_u32 s71, s71, {k}''')
    if idx is not None: S(f's_add_u32 s71, s71, {s(idx)}')
    S(f's_lshl_b32 s71, s71, 2\ns_add_u32 s71, s71, {OFF_DIAG}')
    set_flag(S, tmp, 's71', 's70', '')

def entry(S, code=True):
    S(f'''
    s_cmp_ge_u32 s2, 256
    s_cbranch_scc1 L_end
    s_load_dwordx4 s[72:75], s[0:1], {ARG['dbg']}
    s_getreg_b32 {s(sTEAM)}, hwreg(HW_REG_XCC_ID, 0, 3)
    {OPT.get('fake', '')}
    v_lshrrev_b32 v1, 6, v0
    v_readfirstlane_b32 {s(sWAVE)}, v1
    v_mov_b32 v3, 0
    v_mov_b32 v2, 1
    s_waitcnt lgkmcnt(0)
    s_mov_b32 s4, s74
    s_mov_b32 s5, s75
    s_mov_b32 s6, {WS_BYTES}
    s_mov_b32 s7, 0x20000
    s_mov_b32 s74, 256
    s_mov_b32 s75, 0x20000
    s_mov_b32 {s(sBUD)}, {BUDGET}
    s_mov_b64 exec, 1
    s_cmp_lg_u32 {s(sWAVE)}, 0
    s_cbranch_scc1 L_not0
    s_lshl_b32 s24, {s(sTEAM)}, 5
    buffer_atomic_add v2, v3, s[72:75], s24 offen sc0
    s_waitcnt vmcnt(0)
    ds_write_b32 v3, v2
    L_not0:
    s_waitcnt lgkmcnt(0)
    s_mov_b64 exec, -1
    ''')
    if code:
        S(f'''s_cmp_lg_u32 {s(sWAVE)}, 1
        s_cbranch_scc1 L_nopf
        s_getpc_b64 s[8:9]
        L_pc:
        s_mov_b32 s10, L_code_end-L_pc
        s_mov_b32 s11, 0x20000
        s_lshr_b32 s24, s2, 3
        s_lshl_b32 s24, s24, 12
        v_and_b32 v5, 31, v0
        v_lshlrev_b32 v5, 7, v5
        v_add_u32 v5, s24, v5''')
        S.raw('    buffer_load_dword a255, v5, s[8:11], 0 offen')
        S('L_nopf:')
    S(f'''
    s_barrier
    v_and_b32 v0, 63, v0
    ds_read_b32 v4, v3
    s_waitcnt lgkmcnt(0)
    v_readfirstlane_b32 {s(sMEM)}, v4
    s_barrier
    s_cmp_lt_u32 {s(sMEM)}, 32
    s_cbranch_scc1 L_placed
    ''')
    census(S, 4, 24, None)
    S(f'''s_cmp_lg_u32 {s(sWAVE)}, 0
    s_cbranch_scc1 L_ov1
    v_mov_b32 v2, 1
    s_mov_b64 exec, 1
    buffer_atomic_add v2, off, s[72:75], 0 offset:{DBG_OVER} sc0
    s_waitcnt vmcnt(0)
    ds_write_b32 v3, v2
    s_waitcnt lgkmcnt(0)
    s_mov_b64 exec, -1
    L_ov1:
    s_barrier
    ds_read_b32 v2, v3
    s_waitcnt lgkmcnt(0)
    v_readfirstlane_b32 s25, v2
    s_barrier''')
    for x in range(8):
        S(f'''v_readlane_b32 s26, v4, {x}
        s_nop 3
        s_min_u32 s26, s26, 32
        s_add_u32 {s(sMEM)}, s26, s25
        s_mov_b32 {s(sTEAM)}, {x}
        s_cmp_lt_u32 {s(sMEM)}, 32
        s_cbranch_scc1 L_placed
        s_sub_u32 s25, {s(sMEM)}, 32''')
    S('s_endpgm\nL_placed:')

def census(S, tmp, st, dst):
    L = lab('cen')
    S.wait(vm=0)
    S(f'''v_mbcnt_lo_u32_b32 {v(tmp+1)}, -1, 0
    v_and_b32 {v(tmp+1)}, 7, {v(tmp+1)}
    v_lshlrev_b32 {v(tmp+1)}, 5, {v(tmp+1)}
    {L}:
    buffer_load_dword {v(tmp)}, {v(tmp+1)}, s[72:75], 0 offen sc1''')
    S.force_wait(vm=0)
    if dst is not None:
        S(f'v_readlane_b32 {s(st)}, {v(tmp)}, {s(sTEAM)}\ns_mov_b32 {s(dst)}, 0\ns_nop 2\ns_cmp_ge_u32 {s(st)}, 32\ns_cbranch_scc1 {L}d\ns_mov_b32 {s(dst)}, 1')
    S(f'v_mov_b32 {v(tmp+2)}, {v(tmp)}')
    for k in (1, 2, 4): S(f'v_add_u32_dpp {v(tmp+2)}, {v(tmp+2)}, {v(tmp+2)} row_ror:{k} row_mask:0xf bank_mask:0xf')
    S(f'v_readfirstlane_b32 {s(st)}, {v(tmp+2)}\ns_nop 3\ns_cmp_ge_u32 {s(st)}, 256\ns_cbranch_scc1 {L}d')
    spin_tail(S, L); S.label(L + 'd')
def probe_near(S, tmp, idx):
    p = lab('pn')
    offs = [C2_X + 0x80000 + ph*0x2000 + j for j in (0, 0x1400, 0x4800, 0x5c00) for ph in range(2)]
    S(f's_lshl_b32 s26, {s(idx)}, 7\ns_add_u32 s26, s26, {C2_X}\ns_add_u32 s24, s4, s26\ns_addc_u32 s25, s5, 0')
    for i, o in enumerate(offs): S(f's_load_dword s{36+i}, s[24:25], {o - C2_X} glc')
    S('s_mov_b32 s28, -1\ns_mov_b32 s29, -1\ns_mov_b32 s32, 1\ns_waitcnt lgkmcnt(0)')
    S.label(p + 'r')
    for i, o in enumerate(offs):
        L = f'{p}s{i}'
        S(f's_not_b32 s30, s{36+i}\ns_mov_b32 s{26 + (i & 1)}, 0')
        S.raw(f'    s_load_dword s30, s[24:25], {o - C2_X} glc')
        S(f'''{L}:
        s_add_u32 s{26 + (i & 1)}, s{26 + (i & 1)}, 0x100000
        s_cbranch_scc1 {L}x
        s_cmp_eq_u32 s30, s{36+i}
        s_cbranch_scc0 {L}
        {L}x:
        s_waitcnt lgkmcnt(0)''')
        if i & 1: S('s_min_u32 s28, s28, s26\ns_min_u32 s29, s29, s27')
    S(f'''s_sub_u32 s32, s32, 1
    s_cbranch_scc0 {p}r
    s_cmp_gt_u32 s29, s28
    s_cselect_b32 s24, 8, 0
    s_cmp_eq_u32 s29, s28
    s_cselect_b32 s24, 4, s24
    s_add_u32 s24, s24, 0x10000
    v_mov_b32 {v(tmp)}, s24
    s_mov_b64 exec, 1''')
    S.raw(f'    buffer_atomic_add {v(tmp)}, off, s[72:75], 0 offset:{DBG_NEAR}')
    S('s_mov_b64 exec, -1')
def get_near(S, tmp, dst):
    S(f'v_mov_b32 {v(tmp+1)}, 0')
    wait_flags(S, tmp, 1, tmp + 1, 0, 0x80000, lanes=1, srd=s(DBG, 4), off=DBG_NEAR)
    S(f'v_readfirstlane_b32 {s(dst)}, {v(tmp)}\ns_nop 3\ns_and_b32 {s(dst)}, {s(dst)}, 0x60\ns_cselect_b32 {s(dst)}, 0x2000, 0')
BUDGET = 300000

def swz(dst, src, tmp=None):
    t = dst if tmp is None else tmp
    assert t != src
    return f's_lshr_b32 {s(t)}, {s(src)}, 8\ns_and_b32 {s(t)}, {s(t)}, 0x2000\ns_xor_b32 {s(dst)}, {s(src)}, {s(t)}'

def service(S, diag=False):
    J, T0, T1 = 16, 17, 18
    ring, done, np_ = lab('sv'), lab('sv'), lab('sv')
    S(f'''s_sub_u32 {s(J)}, {s(sMEM)}, 24
    s_lshl_b32 {s(J)}, {s(J)}, 1
    s_add_u32 {s(J)}, {s(J)}, {s(sTEAM)}
    s_sub_u32 {s(J)}, {s(J)}, 1
    s_cmp_gt_u32 {s(J)}, 14
    s_cbranch_scc1 L_end
    s_lshl_b32 {s(T0)}, {s(sWAVE)}, 6
    v_add_u32 v2, {s(T0)}, v0
    v_lshlrev_b32 v1, 4, v2
    s_cmp_le_u32 {s(J)}, 2
    s_cselect_b32 s19, {DBG_INIT}, {DBG_RING}
    s_sub_u32 s20, {s(J)}, 1
    s_lshl_b32 s20, s20, 15
    s_sub_u32 {s(J)}, {s(J)}, 3
    s_cmp_le_u32 {s(J)}, 1
    s_cbranch_scc1 {ring}
    s_sub_u32 {s(T0)}, {s(J)}, 2
    s_and_b32 {s(T1)}, {s(T0)}, 1
    s_lshl_b32 {s(T1)}, {s(T1)}, 19
    s_lshr_b32 {s(T0)}, {s(T0)}, 1
    s_lshl_b32 {s(T0)}, {s(T0)}, 15
    s_add_u32 {s(T0)}, {s(T0)}, {s(T1)}
    s_add_u32 {s(T0)}, {s(T0)}, {C2_P}
    s_cmp_eq_u32 s19, {DBG_INIT}
    s_cselect_b32 {s(T0)}, s20, {s(T0)}
    v_mov_b64 v[4:5], 0
    v_mov_b64 v[6:7], 0''')
    for i in range(8): S(f'buffer_store_dwordx4 v[4:7], v1, {SRD}, {s(T0)} offen sc1\ns_add_u32 {s(T0)}, {s(T0)}, 4096')
    S(f's_branch {done}\n{ring}:')
    make_srd(S, 8, 'mem0', 10240)
    S(f'''s_mul_i32 {s(T1)}, {s(J)}, 640
    v_bfe_u32 v3, v2, 1, 3
    v_mul_u32_u24 v3, 1280, v3
    v_lshrrev_b32 v4, 4, v2
    v_lshl_add_u32 v3, v4, 5, v3
    v_and_b32 v4, 1, v2
    v_lshl_add_u32 v3, v4, 4, v3
    v_add_u32 v3, {s(T1)}, v3
    buffer_load_dwordx4 v[8:11], v3, s[8:11], 0 offen
    buffer_load_dwordx4 v[12:15], v3, s[8:11], 0 offen offset:512
    v_mov_b64 v[4:5], -1
    v_mov_b64 v[6:7], -1
    s_lshl_b32 {s(J)}, {s(J)}, 17''')
    for base in (C2_M, C2_X, C2_X + 8192):
        for slot in (1, 2, 3, 0):
            for h in range(2):
                S(f's_add_u32 {s(T0)}, {s(J)}, {base + slot*MB + h*4096}')
                S(f'buffer_store_dwordx4 {v(8 + 4*h if slot == 0 else 4, 4)}, v1, {SRD}, {s(T0)} offen sc1')
    S(f'{done}:\ns_waitcnt vmcnt(0)')
    if diag: tstamp(S, 6)
    S(f'''s_barrier
    s_cmp_lg_u32 {s(sWAVE)}, 0
    s_cbranch_scc1 L_end
    v_mov_b32 v2, 1
    s_mov_b64 exec, 1
    buffer_atomic_add v2, off, s[72:75], s19
    s_branch L_end''')


def dstamp(S, word, tmp, mx=True):
    S.force_wait(lg=0)
    S('s_memrealtime s[70:71]\ns_waitcnt lgkmcnt(0)\ns_and_b32 s70, s70, 0xffffff')
    if not mx: S('s_sub_u32 s70, 0x1000000, s70')
    S(f'v_mov_b32 {v(tmp)}, s70\ns_mov_b64 exec, 1\nbuffer_atomic_umax {v(tmp)}, off, s[72:75], 0 offset:{4*word}\ns_mov_b64 exec, -1')
```

```python
from common import *
from pre import sNEAR, sKMB
XD, WD = 76, 8
sSEG, sU, sT0, sT1, sT2, sPA, sPAr, sFT, sCS, sNEG, sQT, sHH, sY, sFK, sPRE, sT3 = range(16, 32)
sMSK = 32
sPM = 48
sA, sTOK = 50, 51
P16, P4, P8, PST, PST1, PRD, PRD1, PRW, PRS = range(1, 10)
PK, PKM, PX, PO, PQ, PV = range(10, 16)
PY, PH = 10, 11
SEL, MODV = 16, 20
T0 = 48
def WR(f): return 256 + 4*f if f < 64 else 192 + 4*(f - 64)
L_O, L_R, L_IN = 0, 16384, 32768
L_Y, L_H, L_R2 = 0, 45056, 53248
F_A, F_Y, F_B, F_D = 0, 512, 1024, 1536

def consts(S, stage):
    n, g, t, u = T0, T0 + 1, T0 + 2, T0 + 3
    S(f'''
    s_and_b32 {s(sA)}, {s(sMEM)}, 15
    s_and_b32 {s(sQT)}, {s(sWAVE)}, 1
    s_lshr_b32 {s(sHH)}, {s(sWAVE)}, 1
    s_lshl_b32 {s(sTOK)}, {s(sA)}, 1
    s_add_u32 {s(sTOK)}, {s(sTOK)}, {s(sHH)}
    v_and_b32 {v(n)}, 15, v0
    v_lshrrev_b32 {v(g)}, 4, v0
    v_lshlrev_b32 {v(P16)}, 4, v0
    v_lshlrev_b32 {v(P4)}, 2, v0
    v_lshlrev_b32 {v(P8)}, 3, v0
    v_mul_u32_u24 {v(t)}, {4*TS}, {v(g)}
    v_lshl_add_u32 {v(PST)}, {v(n)}, 4, {v(t)}
    v_lshl_add_u32 {v(PST1)}, {v(n)}, 2, {v(t)}
    v_mul_u32_u24 {v(t)}, 1280, {v(g)}
    v_lshl_add_u32 {v(PRD)}, {v(n)}, 4, {v(t)}
    v_lshlrev_b32 {v(t)}, 4, {v(g)}
    v_lshl_add_u32 {v(PRW)}, {v(n)}, 5, {v(t)}
    s_mul_i32 {s(sT0)}, {s(sWAVE)}, 2560
    v_add_u32 {v(PRW)}, {s(sT0)}, {v(PRW)}
    v_add_u32 {v(PRS)}, {s(sT0)}, {v(P8)}
    s_mov_b32 {s(sPM)}, 0x05040100
    s_mov_b32 {s(sPM+1)}, 0x07060302
    s_sub_u32 {s(sSEG)}, {s(sTEAM)}, {8 - NPOST}
    s_mul_i32 {s(sPA)}, {s(sSEG)}, {TEAMB}
    s_add_u32 {s(sPA)}, {s(sPA)}, {OFF_PA + (PA_B + 0x2000 if stage == 2 else 0)}
    s_xor_b32 {s(sPA)}, {s(sPA)}, {s(sNEAR)}
    s_lshl_b32 {s(sY)}, {s(sSEG)}, 18
    s_add_u32 {s(sY)}, {s(sY)}, {OFF_Y}
    s_mul_i32 {s(sT0)}, {s(sTOK)}, {TS}
    s_lshl_b32 {s(sT1)}, {s(sQT)}, 15
    s_add_u32 {s(sPAr)}, {s(sPA)}, {s(sT0)}
    s_add_u32 {s(sPAr)}, {s(sPAr)}, {s(sT1)}
    s_lshr_b32 {s(sT0)}, {s(sA)}, 2
    s_lshl_b32 {s(sT0)}, {s(sT0)}, 14
    s_add_u32 {s(sPA)}, {s(sPA)}, {s(sT0)}
    s_and_b32 {s(sT0)}, {s(sA)}, 3
    s_mul_i32 {s(sT0)}, {s(sT0)}, 1280
    s_mul_i32 {s(sT1)}, {s(sWAVE)}, 320
    s_add_u32 {s(sPA)}, {s(sPA)}, {s(sT0)}
    s_add_u32 {s(sPA)}, {s(sPA)}, {s(sT1)}
    s_lshl_b32 {s(sFT)}, {s(sSEG)}, 11
    s_add_u32 {s(sFT)}, {s(sFT)}, {FL_T}
    s_mov_b32 {s(sU)}, 1
    ''')
    if stage == 1:
        S(f'''
        v_mov_b32 {v(PRD1)}, {v(PRD)}
        v_lshrrev_b32 {v(t)}, 2, {v(n)}
        v_lshlrev_b32 {v(t)}, 6, {v(t)}
        v_lshl_add_u32 {v(t)}, {v(g)}, 8, {v(t)}
        v_and_b32 {v(u)}, 1, {v(n)}
        v_lshl_add_u32 {v(PKM)}, {v(u)}, 4, {v(t)}
        v_bfe_u32 {v(u)}, {v(n)}, 1, 1
        v_lshl_add_u32 {v(PK)}, {v(u)}, 11, {v(PKM)}
        v_lshrrev_b32 {v(t)}, 1, {v(g)}
        v_lshlrev_b32 {v(t)}, 6, {v(t)}
        v_lshlrev_b32 {v(u)}, 3, {v(n)}
        v_xor_b32 {v(t)}, {v(t)}, {v(u)}
        v_lshl_add_u32 {v(PX)}, {v(g)}, 7, {v(t)}
        s_lshl_b32 {s(sT0)}, {s(sQT)}, 13
        s_lshl_b32 {s(sT1)}, {s(sHH)}, 12
        s_add_u32 {s(sT0)}, {s(sT0)}, {s(sT1)}
        v_add_u32 {v(PO)}, {s(sT0)}, {v(P16)}
        s_mul_i32 {s(sT0)}, {s(sHH)}, 24576
        s_add_u32 {s(sT0)}, {s(sT0)}, {L_IN}
        v_add_u32 {v(PV)}, {s(sT0)}, {v(P16)}
        v_add_u32 {v(PK)}, {s(sT0)}, {v(PK)}
        s_lshl_b32 {s(sT1)}, {s(sQT)}, 12
        v_add_u32 {v(PQ)}, {s(sT1)}, {v(PV)}
        s_mov_b32 {s(sCS)}, {QSCALE}
        s_mov_b32 {s(sNEG)}, {f2u(-1e9 * 1.4426950408889634)}
        s_lshl_b32 {s(sFK)}, {s(sTOK)}, 7
        s_add_u32 {s(sFK)}, {s(sFK)}, {FL_KV}
        s_mov_b32 {s(sPRE)}, 0
        s_lshl_b32 {s(sKMB)}, {s(sA)}, 14
        s_lshl_b32 {s(sT0)}, {s(sHH)}, 12
        s_add_u32 {s(sKMB)}, {s(sKMB)}, {s(sT0)}
        s_add_u32 {s(sKMB)}, {s(sKMB)}, {OFF_KM + 0x2000}
        s_xor_b32 {s(sKMB)}, {s(sKMB)}, {s(sNEAR)}
        s_lshl_b32 {s(sT0)}, {s(sQT)}, 4
        v_add_u32 {v(t)}, {s(sT0)}, {v(n)}
        v_lshlrev_b32 {v(u)}, 2, {v(g)}
        v_sub_u32 {v(t)}, {v(t)}, {v(u)}
        ''')
        for kt in range(2):
            for i in range(4): S(f'v_cmp_le_i32 {s(sMSK + 8*kt + 2*i, 2)}, {16*kt + i}, {v(t)}')
    else:
        S(f'''
        v_mul_u32_u24 {v(t)}, {YS}, {v(n)}
        v_lshl_add_u32 {v(PY)}, {v(g)}, 4, {v(t)}
        s_lshl_b32 {s(sT0)}, {s(sWAVE)}, 10
        v_add_u32 {v(PH)}, {s(sT0)}, {v(P16)}
        s_lshl_b32 {s(sT0)}, {s(sQT)}, 3
        v_add_u32 {v(t)}, {s(sT0)}, {v(g)}
        v_cmp_gt_u32 vcc, 10, {v(t)}
        v_mov_b32 {v(u)}, {WS_BYTES}
        v_cndmask_b32 {v(PRD1)}, {v(u)}, {v(PRD)}, vcc
        ''')
    for d in range(4):
        S(f'''v_mov_b32 {v(SEL+d)}, 0
        v_mov_b32 {v(t)}, 0x3f80
        v_cmp_eq_u32 vcc, {2*d}, {v(n)}
        v_cndmask_b32 {v(SEL+d)}, {v(SEL+d)}, {v(t)}, vcc
        v_mov_b32 {v(t)}, 1.0
        v_cmp_eq_u32 vcc, {2*d+1}, {v(n)}
        v_cndmask_b32 {v(SEL+d)}, {v(SEL+d)}, {v(t)}, vcc''')

def load_perm(S, nch, reg, srow):
    A4, A1, t, NB = T0, T0 + 1, T0 + 2, 3
    S(f'''v_lshrrev_b32 {v(t)}, 4, v0
    v_mul_u32_u24 {v(t)}, {4*1280}, {v(t)}
    s_mul_i32 {s(sT1)}, {s(srow)}, 1280
    s_mul_i32 {s(sT0)}, {s(sWAVE)}, 320
    s_add_u32 {s(sT1)}, {s(sT1)}, {s(sT0)}
    v_add_u32 {v(t)}, {s(sT1)}, {v(t)}
    v_and_b32 {v(A1)}, 15, v0
    v_lshl_add_u32 {v(A4)}, {v(A1)}, 4, {v(t)}
    v_lshl_add_u32 {v(A1)}, {v(A1)}, 2, {v(t)}
    v_add_u32 {v(A1)}, 256, {v(A1)}''')
    def issue(c):
        b = T0 + 8 + 40*(c % NB)
        for i in range(8):
            S(f'buffer_load_dwordx4 {v(b + 4*i, 4)}, {v(A4)}, {s(WD,4)}, 0 offen offset:{(i & 3)*1280}')
            S(f'buffer_load_dword {v(b + 32 + i)}, {v(A1)}, {s(WD,4)}, 0 offen offset:{(i & 3)*1280}')
            if i & 3 == 3: S(f'v_add_u32 {v(A4)}, {16*1280}, {v(A4)}\nv_add_u32 {v(A1)}, {16*1280}, {v(A1)}')
    for c in range(NB): issue(c)
    for c in range(nch):
        b = T0 + 8 + 40*(c % NB)
        for tt in range(10):
            for d in range(4):
                src = (lambda i: b + 4*i + (tt >> 1)) if tt < 8 else (lambda i: b + 32 + i)
                dst = reg(c, tt) + d
                x = dst if dst < 256 else t + (d & 1)
                S(f'v_perm_b32 {v(x)}, {v(src(2*d+1))}, {v(src(2*d))}, {s(sPM + (tt & 1))}')
                if dst >= 256: S(f'v_accvgpr_write_b32 {r(dst)}, {v(x)}')
        if c + NB < nch: issue(c + NB)

def load_mod(S, parts):
    S(f'v_lshlrev_b32 {v(T0+1)}, 7, v0\ns_mov_b32 {s(sT0)}, {FL_MOD + 128*20*parts[0]}')
    wait_flags(S, T0, 1, T0 + 1, s(sT0), 1, lanes=20*len(parts))
    for j, part in enumerate(parts):
        S(f's_mov_b32 {s(sT0)}, {OFF_MOD + part*1280}')
        for i in range(5): S(f'buffer_load_dword {v(MODV + 5*j + i)}, {v(P4)}, {SRD}, {s(sT0)} offen offset:{256*i} sc1')

def gemm_out(S, nk, W, rd, sc):
    FR = T0; AC = [T0 + 32, T0 + 72]; PKD = T0 + 112
    fr = lambda qt, k: FR + 4*((nk*qt + k) % 8)
    def epi(qt):
        out = []
        for i in range(4):
            p = PKD + 6*i
            out += [f'v_cvt_pk_bf16_f32 {v(p + d)}, {v(AC[qt] + 8*d + i)}, {v(AC[qt] + 8*d + 4 + i)}' for d in range(5)]
            out.append(f's_add_u32 {s(sT0)}, {s(sPA)}, {(16*qt + i)*TS}\nbuffer_store_dwordx4 {v(p,4)}, {v(PST)}, {SRD}, {s(sT0)} offen{sc}')
            out.append(f'buffer_store_dword {v(p+4)}, {v(PST1)}, {SRD}, {s(sT0)} offen offset:256{sc}')
        return out
    q = []
    for qt in range(2):
        n = 0
        for k in range(nk):
            for t in range(10):
                S(MF32(AC[qt] + 4*t, fr(qt, k), W(k, t), AC[qt] + 4*t if k else None)); n += 1
                if q and n >= 2 and (nk == 4 or n % 2 == 0): S(q.pop(0))
            if nk == 8 and qt == 0: S(rd(1, k, fr(1, k)))
        assert not q
        q = epi(qt)
    for x in q: S(x)

def reduce_rows(S, lr):
    D, AC = T0, T0 + 40
    for i in range(2):
        S(f's_add_u32 {s(sT0)}, {s(sPAr)}, {i*16384}')
        for t in range(5): S(f'buffer_load_dwordx4 {v(D + 20*i + 4*t, 4)}, {v(PRD + i)}, {SRD}, {s(sT0)} offen offset:{256*t} sc1')
    S.hoist = False
    for i in range(2):
        for t in range(5): S(MF32(AC + 4*t, SEL, D + 20*i + 4*t, AC + 4*t if i else None))
    S.hoist = True
    S('s_mov_b32 exec_hi, 0')
    for t in range(5): S(f'ds_write_b128 {v(PRW)}, {v(AC + 4*t, 4)} offset:{lr + 512*t}')
    S('s_mov_b64 exec, -1')
    S.wait(lg=0); S('s_barrier')

def row_sum(S, R, lr):
    for w in range(2):
        for i in range(5): S(f'ds_read_b64 {v(R + 10*w + 2*i, 2)}, {v(PRS)} offset:{lr + 2560*w + 512*i}')
    for i in range(10): S(f'v_add_f32 {v(R+i)}, {v(R+i)}, {v(R+10+i)}')

def lnorm(S, dst, src, T):
    S(f'v_add_f32 {v(T)}, {v(src)}, {v(src+1)}')
    for i in range(2, 10): S(f'v_add_f32 {v(T)}, {v(T)}, {v(src+i)}')
    xsum(S, T, T + 1, row8=True, row421=True)
    S(f'v_mul_f32 {v(T)}, {f2u(1/640)}, {v(T)}')
    for i in range(10): S(f'v_sub_f32 {v(dst+i)}, {v(src+i)}, {v(T)}')
    S(f'v_mul_f32 {v(T)}, {v(dst)}, {v(dst)}')
    for i in range(1, 10): S(f'v_fmac_f32 {v(T)}, {v(dst+i)}, {v(dst+i)}')
    xsum(S, T, T + 1, row8=True, row421=True)
    S(f'v_mov_b32 {v(T+1)}, {f2u(1e-5)}\nv_fmac_f32 {v(T+1)}, {f2u(1/640)}, {v(T)}\nv_rsq_f32 {v(T)}, {v(T+1)}')
    for i in range(10): S(f'v_mul_f32 {v(dst+i)}, {v(T)}, {v(dst+i)}')

def wave_flag(S, off, sc):
    S(f's_lshl_b32 {s(sT0)}, {s(sA)}, 2\ns_add_u32 {s(sT0)}, {s(sT0)}, {s(sWAVE)}\ns_lshl_b32 {s(sT0)}, {s(sT0)}, 2\ns_add_u32 {s(sT0)}, {s(sT0)}, {s(sFT)}')
    S.wait(vm=0); set_flag(S, T0, s(sT0), s(sU), sc, off=off)

def both(S, unit, diag, step):
    Ls = [lab('unit'), lab('unit')]
    census(S, T0, sT0, sT1)
    S.fence(); S(f's_cmp_lg_u32 {s(sT1)}, 0\ns_cbranch_scc1 {Ls[1]}')
    for L, sc in zip(Ls, ('', ' sc1')):
        S.label(L)
        unit(S, sc, diag == 1)
        S(f's_add_u32 {s(sU)}, {s(sU)}, 1\ns_xor_b32 {s(sY)}, {s(sY)}, 0x20000\n{step}\ns_cmp_lt_u32 {s(sSEG)}, 64\ns_cbranch_scc1 {L}')
        S.force_wait(vm=0, lg=0); S('s_endpgm')

def mk_ts(S, diag):
    def ts(k):
        if diag:
            S(f's_mul_i32 s69, {s(sU)}, 12'); tstamp(S, k, tmp=188, idx=69)
    return ts

X0, XN = 35, 40
def fetch(seg):
    out = [f'''s_lshl_b32 {s(sT3)}, {s(seg)}, 5
    s_add_u32 {s(sT3)}, {s(sT3)}, {s(sTOK)}
    s_lshl_b32 {s(sT1)}, {s(sT3)}, 3
    s_add_u32 {s(sT1)}, {s(sT1)}, {s(sQT)}
    s_lshl_b32 {s(sT1)}, {s(sT1)}, 12
    s_add_u32 {s(sT1)}, {s(sT1)}, {s(sNEAR)}
    s_add_u32 {s(sT1)}, {s(sT1)}, {OFF_KV}
    {swz(sT0, sT1)}
    s_mul_i32 {s(sT1)}, {s(sHH)}, 24576
    s_lshl_b32 m0, {s(sQT)}, 12
    s_add_u32 m0, m0, {s(sT1)}
    s_add_u32 m0, m0, {L_IN}
    s_mul_i32 {s(sT3)}, {s(sT3)}, 1280''']
    for j in range(3):
        if j: out.append(f's_add_u32 m0, m0, 8192\ns_xor_b32 {s(sT0)}, {s(sT0)}, {(0, 0x2000, 0x4000)[j]}')
        out += [f'buffer_load_dwordx4 {v(P16)}, {SRD}, {s(sT0)} offen offset:{1024*i} sc1 lds' for i in range(4)]
    out += [f'buffer_load_dword {v(XN + i)}, {v(P4)}, {s(XD,4)}, {s(sT3)} offen offset:{256*i}' for i in range(5)]
    return out

def unit1(S, sc, diag):
    ts = mk_ts(S, diag)
    Q, K, V, KM, VM, SS, T = T0, T0 + 16, T0 + 48, T0 + 80, T0 + 96, T0 + 104, T0 + 116
    FN = 190
    ts(0)
    have = lab('have')
    S(f's_cmp_lg_u32 {s(sPRE)}, 0\ns_cbranch_scc1 {have}\ns_add_u32 {s(sT1)}, {s(sSEG)}, 1')
    wait_flags(S, T, 1, P16, s(sFK), s(sT1), lanes=6)
    for x in fetch(sSEG): S(x)
    S.wait(vm=0)
    S.label(have)
    S('s_barrier')
    for i in range(4): S(f'ds_read_b128 {v(Q + 4*i, 4)}, {v(PQ)} offset:{1024*i}')
    for kt in range(2):
        for i in range(4): S(f'ds_read_b128 {v(K + 16*kt + 4*i, 4)}, {v(PK)} offset:{8192 + kt*4096 + (i >> 1)*1024 + (i & 1)*32}')
    S(f's_lshl_b32 {s(sT1)}, {s(sSEG)}, 18\ns_add_u32 {s(sT1)}, {s(sT1)}, {s(sKMB)}\n{swz(sT2, sT1)}')
    for i in range(5): S(f'v_mov_b32 {v(X0 + i)}, {v(XN + i)}')
    for kt in range(2):
        for i in range(4):
            S(MF32(SS + 4*kt, K + 16*kt + 4*i, Q + 4*i, SS + 4*kt if i else None))
            S(f'ds_read_b128 {v(V + 16*kt + 4*i, 4)}, {v(PV)} offset:{16384 + 4096*kt + 1024*i}')
    S(f'v_mov_b32 {v(T)}, {s(sNEG)}')
    for i in range(8): S(f'v_cndmask_b32 {v(SS+i)}, {v(T)}, {v(SS+i)}, {s(sMSK + 2*i, 2)}')
    MX = T + 1
    S(f'v_max_f32 {v(MX)}, {v(SS)}, {v(SS+1)}')
    for i in range(2, 8, 2): S(f'v_max3_f32 {v(MX)}, {v(MX)}, {v(SS+i)}, {v(SS+i+1)}')
    S.wait(vm=0, lg=0); ts(1)
    C = lab('kc')
    S(f'''s_lshl_b32 {s(sT3)}, {s(sQT)}, 5
    s_add_u32 {s(sT3)}, {s(sT3)}, {s(sTOK)}
    s_lshl_b32 {s(sT3)}, {s(sT3)}, 6
    s_add_u32 {s(sT3)}, {s(sT3)}, {FL_KM}
    {C}:
    s_load_dword s54, s[4:5], {s(sT3)} glc
    s_waitcnt lgkmcnt(0)
    s_cmp_gt_u32 s54, {s(sSEG)}
    s_cbranch_scc1 {C}d''')
    spin_tail(S, C); S.label(C + 'd'); S('s_barrier')
    for i in range(4): S(f'buffer_load_dwordx4 {v(KM + 4*i, 4)}, {v(PKM)}, {SRD}, {s(sT2)} offen offset:{(i >> 1)*1024 + (i & 1)*32} sc1')
    for i in range(4): S(f'buffer_load_dwordx2 {v(VM + 2*i, 2)}, {v(PX)}, {SRD}, {s(sT2)} offen offset:{2048 + 512*i} sc1')
    S(f'v_and_b32 {v(FN+1)}, 0x70, {v(P16)}\nv_min_u32 {v(FN+1)}, 0x50, {v(FN+1)}')
    S(f'buffer_load_dword {v(FN)}, {v(FN+1)}, {SRD}, {s(sFK)} offen sc1')
    for i in range(4): S(MF32(SS + 8, KM + 4*i, Q + 4*i, SS + 8 if i else None))
    ts(2)
    S(f'v_mul_f32 {v(SS+8)}, {s(sCS)}, {v(SS+8)}\nv_mul_f32 {v(SS+9)}, {s(sCS)}, {v(SS+9)}\nv_max3_f32 {v(MX)}, {v(MX)}, {v(SS+8)}, {v(SS+9)}')
    xsum(S, MX, T, op='max')
    for i in range(10): S(f'v_sub_f32 {v(SS+i)}, {v(SS+i)}, {v(MX)}')
    for i in range(10): S(f'v_exp_f32 {v(SS+i)}, {v(SS+i)}')
    PX_, PM_, ON, LL, OA = KM, KM + 4, KM + 8, KM + 12, K
    S(f'v_mov_b32 {v(PM_+1)}, 0\nv_mov_b32 {v(PM_+2)}, 0')
    for i in range(4): S(f'v_cvt_pk_bf16_f32 {v(PX_+i)}, {v(SS+2*i)}, {v(SS+2*i+1)}\nv_mov_b32 {v(ON+i)}, 0x3f803f80')
    S(f'v_cvt_pk_bf16_f32 {v(PM_)}, {v(SS+8)}, {v(SS+9)}\nv_cvt_pk_bf16_f32 {v(PM_+3)}, {v(SS+8)}, {v(SS+9)}')
    def fin(c):
        return [f'v_mul_f32 {v(OA + 8*c + i)}, {v(T)}, {v(OA + 8*c + i)}' for i in range(8)] + \
               [f'v_cvt_pk_bf16_f32 {v(Q + 4*c + i)}, {v(OA + 8*c + 2*i)}, {v(OA + 8*c + 2*i + 1)}' for i in range(4)] + \
               [f'ds_write_b128 {v(PO)}, {v(Q + 4*c, 4)} offset:{L_O + 1024*c}']
    S(MF32(LL, ON, PX_))
    for i in range(4): S(MF32(OA + 4*i, V + 4*i, PX_))
    S(MF16(LL, ON, PM_, LL))
    for i in range(4): S(MF16(OA + 4*i, VM + 2*(i >> 1), PM_ + 2*(i & 1), OA + 4*i))
    S(f'v_rcp_f32 {v(T)}, {v(LL)}')
    q = fin(0) + fin(1)
    for j in range(8):
        i = 4 + (j & 3)
        S(MF32(OA + 4*i, V + 4*i, PX_) if j < 4 else MF16(OA + 4*i, VM + 2*(i >> 1), PM_ + 2*(i & 1), OA + 4*i))
        for _ in range(2): S(q.pop(0))
    for x in q + fin(2) + fin(3): S(x)
    S.wait(lg=0); S('s_barrier')
    rd = lambda qt, k, reg: f'ds_read_b128 {v(reg, 4)}, {v(P16)} offset:{L_O + 1024*(8*qt + k)}'
    for k in range(8): S(rd(0, k, T0 + 4*k))
    ts(3)
    nop = lab('nopre')
    S(f'''s_add_u32 {s(sSEG)}, {s(sSEG)}, {NPOST}
    v_cmp_ge_u32 vcc, {s(sSEG)}, {v(FN)}
    s_mov_b32 {s(sPRE)}, 0
    s_cbranch_vccnz {nop}
    s_mov_b32 {s(sPRE)}, 1''')
    st0 = S.state()
    for x in fetch(sSEG): S(x)
    S.label(nop); S.vm = st0[0]
    gemm_out(S, 8, lambda k, t: WR(10*k + t), rd, sc)
    ts(4)
    wave_flag(S, F_A, sc)
    wait_flags(S, T0, 1, P4, s(sFT), s(sU), off=F_A)
    ts(5)
    reduce_rows(S, L_R)
    ts(6)
    nw = lab('p5')
    S(f's_cmp_lg_u32 {s(sQT)}, 0\ns_cbranch_scc1 {nw}')
    R, N, X1, T = T0, T0 + 20, T0 + 30, T0 + 40
    DF = T0 + 50
    S(f'buffer_load_dword {v(DF)}, {v(P4)}, {SRD}, {s(sFT)} offen offset:{F_D} sc1')
    row_sum(S, R, L_R)
    for i in range(5):
        unpack(S, T, T + 1, MODV + i); unpack(S, X1 + 2*i, X1 + 2*i + 1, X0 + i)
        S(f'v_fmac_f32 {v(X1+2*i)}, {v(T)}, {v(R+2*i)}\nv_fmac_f32 {v(X1+2*i+1)}, {v(T+1)}, {v(R+2*i+1)}')
        S(f'v_cvt_pk_bf16_f32 {v(X0+i)}, {v(X1+2*i)}, {v(X1+2*i+1)}')
        unpack(S, X1 + 2*i, X1 + 2*i + 1, X0 + i)
    lnorm(S, N, X1, T)
    okd = lab('okd')
    S(f's_max_u32 {s(sT1)}, {s(sU)}, 2\ns_sub_u32 {s(sT1)}, {s(sT1)}, 2\nv_cmp_gt_u32 vcc, {s(sT1)}, {v(DF)}\ns_cbranch_vccz {okd}')
    wait_flags(S, DF, 1, P4, s(sFT), s(sT1), off=F_D)
    S.label(okd)
    S(f's_mul_i32 {s(sT0)}, {s(sTOK)}, 1280\ns_add_u32 {s(sT0)}, {s(sT0)}, {s(sY)}\ns_add_u32 {s(sT0)}, {s(sT0)}, 65536')
    for i in range(5):
        S(f'buffer_store_dword {v(X0+i)}, {v(P4)}, {SRD}, {s(sT0)} offen offset:{256*i}{sc}')
        unpack(S, R + 2*i, R + 2*i + 1, MODV + 5 + i); unpack(S, T, T + 1, MODV + 10 + i)
        S(f'v_fmac_f32 {v(R+2*i)}, {v(T)}, {v(N+2*i)}\nv_fmac_f32 {v(R+2*i+1)}, {v(T+1)}, {v(N+2*i+1)}')
    lnorm(S, N, R, T)
    S(f's_mul_i32 {s(sT0)}, {s(sTOK)}, {YS}\ns_add_u32 {s(sT0)}, {s(sT0)}, {s(sY)}')
    for i in range(5):
        S(f'v_cvt_pk_bf16_f32 {v(R+i)}, {v(N+2*i)}, {v(N+2*i+1)}')
        S(f'buffer_store_dword {v(R+i)}, {v(P4)}, {SRD}, {s(sT0)} offen offset:{256*i}{sc}')
    S(f's_lshl_b32 {s(sT0)}, {s(sTOK)}, 2\ns_add_u32 {s(sT0)}, {s(sT0)}, {s(sFT)}')
    S.wait(vm=0); set_flag(S, T, s(sT0), s(sU), sc, off=F_Y)
    S.label(nw)
    ts(7)
    wait_flags(S, T0, 1, P4, s(sFT), s(sU), lanes=32, off=F_Y)
    ts(8)

def stage1(S, sc, diag):
    consts(S, 1)
    make_srd(S, WD, 'Wo', 4096*1280)
    S(f's_lshl_b32 {s(sT2)}, {s(sA)}, 8')
    load_perm(S, 8, lambda k, t: WR(10*k + t), sT2)
    load_mod(S, (2, 3, 4))
    make_srd(S, XD, 'x', 2048*1280)
    if diag: tstamp(S, 5, tmp=188)
    both(S, unit1, diag, '')

B1, XR = 32, 40
W2 = lambda k, t: WR(10*k + t)
W1 = lambda ks, t: WR(40 + 2*ks + t)
def unit2(S, sc, diag):
    ts = mk_ts(S, diag)
    ts(0)
    wait_flags(S, T0, 1, P4, s(sFT), s(sU), lanes=32, off=F_Y)
    ts(1)
    nomlp = lab('nomlp')
    S(f's_cmp_ge_u32 {s(sA)}, 14\ns_cbranch_scc1 {nomlp}a')
    S(f's_mul_i32 {s(sT1)}, {s(sWAVE)}, 11264\ns_add_u32 {s(sT0)}, {s(sY)}, {s(sT1)}')
    for i in range(11):
        if i % 4 == 0: S(f's_add_u32 m0, {s(sT1)}, {L_Y + i*1024}')
        S(f'buffer_load_dwordx4 {v(P16)}, {SRD}, {s(sT0)} offen offset:{(i % 4)*1024} sc1 lds')
        if i % 4 == 3: S(f's_add_u32 {s(sT0)}, {s(sT0)}, 4096')
    S.label(nomlp + 'a')
    S(f's_mul_i32 {s(sT0)}, {s(sTOK)}, 1280\ns_add_u32 {s(sT0)}, {s(sT0)}, {s(sY)}\ns_add_u32 {s(sT0)}, {s(sT0)}, 65536')
    for i in range(5): S(f'buffer_load_dword {v(XR+i)}, {v(P4)}, {SRD}, {s(sT0)} offen offset:{256*i} sc1')
    wave_flag(S, F_D, sc)
    S(f's_cmp_ge_u32 {s(sA)}, 14\ns_cbranch_scc1 {nomlp}')
    S('s_barrier')
    ts(2)
    HA, YB, NB = T0, T0 + 16, 6
    DF = T0 + 60
    fr = [(ks, qt) for qt in range(2) for ks in range(20)]
    rd = lambda k: f'ds_read_b128 {v(YB + 4*(k % NB), 4)}, {v(PY)} offset:{L_Y + fr[k][1]*16*YS + fr[k][0]*64}'
    G, GC = T0 + 44, T0 + 52
    c1 = -2 * 1.4426950408889634 * 0.7978845608028654
    def gelu(qt):
        h = HA + 8*qt
        o = [f'v_mul_f32 {v(G+i)}, {v(h+i)}, {v(h+i)}' for i in range(8)]
        o += [f'v_fmamk_f32 {v(G+i)}, {v(G+i)}, {f2u(c1 * 0.044715)}, {v(GC)}' for i in range(8)]
        o += [f'v_mul_f32 {v(G+i)}, {v(G+i)}, {v(h+i)}' for i in range(8)]
        o += [f'v_exp_f32 {v(G+i)}, {v(G+i)}' for i in range(8)]
        o += [f'v_add_f32 {v(G+i)}, 1.0, {v(G+i)}' for i in range(8)]
        o += [f'v_rcp_f32 {v(G+i)}, {v(G+i)}' for i in range(8)]
        o += [f'v_mul_f32 {v(G+i)}, {v(G+i)}, {v(h+i)}' for i in range(8)]
        o += [f'v_cvt_pk_bf16_f32 {v(h+i)}, {v(G+2*i)}, {v(G+2*i+1)}' for i in range(4)]
        return o + [f'ds_write_b128 {v(PH)}, {v(h,4)} offset:{L_H + 4096*qt}']
    for k in range(NB - 1): S(rd(k))
    S(f'v_mov_b32 {v(GC)}, {f2u(c1)}')
    q = []
    for k, (ks, qt) in enumerate(fr):
        if k == 20: q = gelu(0); S(f'buffer_load_dword {v(DF)}, {v(P4)}, {SRD}, {s(sFT)} offen offset:{F_D} sc1')
        for t in range(2):
            d = HA + 8*qt + 4*t
            S(MF32(d, W1(ks, t), YB + 4*(k % NB), d if ks else B1 + 4*t))
            if t == 0 and k + NB - 1 < 40: S(rd(k + NB - 1))
            if k > 20:
                pop = 1 if q and q[0].startswith(('v_exp', 'v_rcp')) else 2
                for _ in range(pop):
                    if q: S(q.pop(0))
    for x in q + gelu(1): S(x)
    okd = lab('okd')
    S(f'v_cmp_gt_u32 vcc, {s(sU)}, {v(DF)}\ns_cbranch_vccz {okd}')
    wait_flags(S, DF, 1, P4, s(sFT), s(sU), off=F_D)
    S.label(okd)
    S.force_wait(lg=0); S('s_barrier')
    for i in range(8): S(f'ds_read_b128 {v(T0 + 4*i, 4)}, {v(P16)} offset:{L_H + 1024*i}')
    ts(3)
    gemm_out(S, 4, W2, None, sc)
    ts(4)
    wave_flag(S, F_B, sc)
    S.wait(vm=0)
    S.label(nomlp)
    S('s_nop 7')
    wait_flags(S, T0, 1, P4, s(sFT), s(sU), lanes=56, off=F_B)
    ts(5)
    reduce_rows(S, L_R2)
    ts(6)
    nw = lab('p8')
    S(f's_cmp_lg_u32 {s(sQT)}, 0\ns_cbranch_scc1 {nw}')
    R, N, T = T0, T0 + 20, T0 + 30
    row_sum(S, R, L_R2)
    S(f's_lshl_b32 {s(sT0)}, {s(sSEG)}, 5\ns_add_u32 {s(sT0)}, {s(sT0)}, {s(sTOK)}\ns_mul_i32 {s(sT0)}, {s(sT0)}, 1280')
    for i in range(5):
        unpack(S, T, T + 1, MODV + 5 + i); unpack(S, T + 2, T + 3, MODV + i); unpack(S, T + 4, T + 5, XR + i)
        S(f'''v_add_f32 {v(T)}, {v(T)}, {v(R+2*i)}
        v_add_f32 {v(T+1)}, {v(T+1)}, {v(R+2*i+1)}
        v_fmac_f32 {v(T+4)}, {v(T)}, {v(T+2)}
        v_fmac_f32 {v(T+5)}, {v(T+1)}, {v(T+3)}
        v_cvt_pk_bf16_f32 {v(N+i)}, {v(T+4)}, {v(T+5)}
        buffer_store_dword {v(N+i)}, {v(P4)}, {s(XD,4)}, {s(sT0)} offen offset:{256*i}''')
    S.label(nw)
    ts(7)

def stage2(S, sc, diag):
    consts(S, 2)
    now = lab('now')
    S(f's_cmp_ge_u32 {s(sA)}, 14\ns_cbranch_scc1 {now}')
    make_srd(S, WD, 'w1', 640*1728*2)
    AD, t = T0, T0 + 1
    S(f'''
    v_lshrrev_b32 {v(AD)}, 2, v0
    v_mul_u32_u24 {v(AD)}, 3456, {v(AD)}
    v_and_b32 {v(t)}, 3, v0
    v_lshl_add_u32 {v(AD)}, {v(t)}, 4, {v(AD)}
    s_lshl_b32 {s(sT1)}, {s(sA)}, 8
    s_lshl_b32 {s(sT0)}, {s(sWAVE)}, 6
    s_add_u32 {s(sT1)}, {s(sT1)}, {s(sT0)}
    v_add_u32 {v(AD)}, {s(sT1)}, {v(AD)}
    s_mul_i32 {s(sT2)}, {s(sWAVE)}, 40960
    s_mov_b32 m0, {s(sT2)}
    ''')
    for i in range(40):
        S(f'buffer_load_dwordx4 {v(AD)}, {s(WD,4)}, 0 offen lds')
        if i < 39: S(f'v_add_u32 {v(AD)}, {16*3456}, {v(AD)}\ns_add_u32 m0, m0, 1024')
    make_srd(S, WD, 'b1', 3456)
    S(f'''v_lshrrev_b32 {v(t)}, 4, v0
    v_lshlrev_b32 {v(t)}, 3, {v(t)}
    v_add_u32 {v(t)}, {s(sT1)}, {v(t)}
    buffer_load_dwordx2 {v(T0+4,2)}, {v(t)}, {s(WD,4)}, 0 offen
    buffer_load_dwordx2 {v(T0+6,2)}, {v(t)}, {s(WD,4)}, 0 offen offset:32''')
    for i in range(4): unpack(S, B1 + 2*i, B1 + 2*i + 1, T0 + 4 + i)
    S(f'''v_lshrrev_b32 {v(AD)}, 4, v0
    v_bfe_u32 {v(t)}, v0, 2, 2
    v_lshl_add_u32 {v(AD)}, {v(AD)}, 3, {v(t)}
    v_lshlrev_b32 {v(AD)}, 6, {v(AD)}
    v_and_b32 {v(t)}, 3, v0
    v_lshl_add_u32 {v(AD)}, {v(t)}, 3, {v(AD)}
    v_add_u32 {v(AD)}, {s(sT2)}, {v(AD)}''')
    S.wait(vm=0)
    for ks in range(20):
        for tt in range(2):
            for u in range(2): S(f'ds_read_b64_tr_b16 {r(W1(ks, tt) + 2*u, 2)}, {v(AD)} offset:{ks*2048 + u*256 + tt*32}')
    S.wait(lg=0)
    make_srd(S, WD, 'w2', 1728*1280)
    S(f's_lshl_b32 {s(sT2)}, {s(sA)}, 7')
    load_perm(S, 4, W2, sT2)
    S.fence(); S.label(now)
    make_srd(S, WD, 'b2', 1280)
    for i in range(5): S(f'buffer_load_dword {v(MODV + 5 + i)}, {v(P4)}, {s(WD,4)}, 0 offen offset:{256*i}')
    load_mod(S, (5,))
    make_srd(S, XD, 'out', 2048*1280)
    if diag: tstamp(S, 5, tmp=188)
    S.wait(vm=0); S('s_barrier')
    both(S, unit2, diag, f's_add_u32 {s(sSEG)}, {s(sSEG)}, {NPOST}')

def text(sc='', diag=False, cut=False):
    import pre
    S = Stream()
    S(f's_sub_u32 {s(pre.sWI)}, {s(sTEAM)}, {8 - NPOST}\ns_lshl_b32 {s(pre.sWI)}, {s(pre.sWI)}, 5\ns_add_u32 s24, {s(sMEM)}, 24\ns_and_b32 s24, s24, 31\ns_add_u32 {s(pre.sWI)}, {s(pre.sWI)}, s24')
    pre.front(S, diag); S.fence()
    get_near(S, 4, sNEAR)
    if cut: S('s_endpgm')
    if OPT['postwait']:
        S(f's_lshl_b32 {s(sT0)}, {s(sMEM)}, 7\nv_mov_b32 v5, 0')
        wait_flags(S, 4, 1, 5, s(sT0), OPT['postwait'], lanes=1, off=FL_KV)
    L2 = lab('st2')
    S(f's_cmp_ge_u32 {s(sMEM)}, 16\ns_cbranch_scc1 {L2}')
    stage1(S, sc, diag)
    S.label(L2); S.fence()
    stage2(S, sc, diag)
    return S.text()
```

```python
import sys
from common import *
import chain3, chain4, proj, post, pre
from asmlib import kernel_file
NAME = 'adaLN_cond__memory_aug_recurrent_mem_tr__mixer_channel_mlp__prompt'
DEF = dict(OPT)
def chain_text(ko, diag, safe, sc1=False, pfx='c', log=False):
    C = chain4 if OPT.get('c4') else chain3
    t = ''
    H = Stream()
    H(f's_mov_b32 {s(C.sNST)}, 64')
    for w in range(1, 4): H(f's_cmp_eq_u32 {s(sWAVE)}, {w}\ns_cbranch_scc1 L{pfx}w{w}')
    t += H.text()
    for w in range(4):
        c = C.Chain(w, sc1=sc1, ko=ko, pfx=pfx, stamps='L' if log else '')
        T = Stream(); T.label(f'L{pfx}w{w}')
        c.load_weights(T)
        if diag: tstamp(T, 1)
        c.lane_consts(T)
        wait_init(T, 16); wait_init(T, 16, DBG_RING, 12); get_near(T, 16, C.sNEAR); c.setup(T)
        wait_flags(T, C.X, 1, C.P16, s(C.sFLG), 2, lanes=4)
        if diag: tstamp(T, 2, tmp=16); tstamp(T, 4, tmp=16, cyc=True)
        c.enter(T)
        census(T, C.X, C.sT0, C.sT1)
        T.fence()
        T(f's_cmp_lg_u32 {s(C.sT1)}, 0\ns_cbranch_scc1 Ls{w}_top')
        E = Stream(); E.fence()
        if log: E(f's_lshl_b32 s25, s3, 5\ns_add_u32 s25, s25, {s(sMEM)}\ns_lshl_b32 s24, s25, 13\ns_add_u32 s24, s24, {OFF_DIAG + 0x200000 + w*2048}\nv_lshlrev_b32 v3, 1, v0\nbuffer_store_dwordx4 v[248:251], v3, s[4:7], s24 offen\nbuffer_store_dwordx4 v[252:255], v3, s[4:7], s24 offen offset:16')
        if diag: tstamp(E, 3); tstamp(E, 5, cyc=True)
        E('s_endpgm')
        body, ool = c.loop_text()
        t += T.text() + body + E.text() + ool
        body, ool = C.Chain(w, sc1=True, ko=ko, pfx='s').loop_text()
        safe.append(body + E.text() + ool)
    return t

def gen(diag=False, ko='F', cut=False, log=False, **opt):
    OPT.clear(); OPT.update(DEF); OPT.update(opt)
    S = Stream()
    entry(S)
    if diag: tstamp(S, 0)
    S(f'''
    s_cmp_lt_u32 {s(sTEAM)}, 2
    s_cbranch_scc1 L_chain
    s_cmp_lt_u32 {s(sTEAM)}, {8 - NPOST}
    s_cbranch_scc1 L_proj
    s_branch L_post
    L_end:
    s_endpgm
    ''')
    safe = []
    pj, po = proj.text(diag), post.text(diag=diag, cut=cut)
    if diag:
        E = Stream(); tstamp(E, 3); E('s_endpgm')
        pj = pj.replace('    s_endpgm\n', E.text()); po = po.replace('    s_endpgm\n', E.text())
    txt = S.text() + 'L_proj:\n' + pj + 'L_post:\n' + po + 'L_chain:\n' + chain_text(ko, diag, safe, log=log) + 'L_code_end:\n' + ''.join(safe)
    hdr = ''.join(l for l in open(f'cdna_kernels/{NAME}.s.ref') if l.startswith(';') and '@launch' not in l)
    return kernel_file(NAME + '_kernel', txt, '; @launch grid=(256,1,1) block=(256,1,1) lds=163840', header=hdr)
if __name__ == '__main__':
    open(sys.argv[1] if len(sys.argv) > 1 else f'cdna_kernels/{NAME}.s', 'w').write(gen())
```
